```python
import torch

def _softmax(x, axis=-1):
    return torch.softmax(x, dim=axis)
def _gelu(x):
    return torch.nn.functional.gelu(x, approximate="tanh")
def _silu(x):
    return torch.nn.functional.silu(x)
def _sigmoid(x):
    return torch.sigmoid(x)
def _layernorm(x, axis=-1, eps=1e-5):
    m = x.mean(dim=axis, keepdim=True)
    v = x.var(dim=axis, keepdim=True, unbiased=False)
    return (x - m) / torch.sqrt(v + eps)
def _scatter_add(tgt, idx, src, axis=0):
    return tgt.clone().index_add_(axis, idx, src)
def _segment_sum(src, seg, n):
    out = torch.zeros((n,) + src.shape[1:], dtype=src.dtype)
    return out.index_add_(0, seg, src)
def _pad(x, pw):
    flat = tuple(v for pair in reversed(pw) for v in pair)
    return torch.nn.functional.pad(x, flat)

kernel_name = 'recurrent_scan__sliding_local_dilated__geglu_ffn__prompt'

def setup_inputs():

    _w = (lambda a: (lambda t: t.to(torch.bfloat16) if t.is_floating_point() else t)(torch.as_tensor(a)))
    def _A_setup():
        B, S, D = 1, 2048, 576
        return {
            "x": _w((lambda *s: torch.randn(*s, dtype=torch.bfloat16) * 0.05)(B, S, D)),
            "wqkv": _w((lambda *s: torch.randn(*s, dtype=torch.bfloat16) * 0.05)(D, 3 * D)),
            "wo": _w((lambda *s: torch.randn(*s, dtype=torch.bfloat16) * 0.05)(D, D)),
        }
    _A_in = _A_setup()

    def _B_setup():
        B, S, D, F = 1, 2048, 576, 4608
        return {
            "x": _w((lambda *s: torch.randn(*s, dtype=torch.bfloat16) * 0.05)(B, S, D)),
            "w_gate": _w((lambda *s: torch.randn(*s, dtype=torch.bfloat16) * 0.05)(D, F)),
            "w_up": _w((lambda *s: torch.randn(*s, dtype=torch.bfloat16) * 0.05)(D, F)),
            "w_down": _w((lambda *s: torch.randn(*s, dtype=torch.bfloat16) * 0.05)(F, D)),
        }
    _B_in = _B_setup()

    return {
        "A_x": _A_in["x"],
        "A_wqkv": _A_in["wqkv"],
        "A_wo": _A_in["wo"],
        "B_x": _B_in["x"],
        "B_w_gate": _B_in["w_gate"],
        "B_w_up": _B_in["w_up"],
        "B_w_down": _B_in["w_down"],
    }

def reference(A_x, A_wqkv, A_wo, B_x, B_w_gate, B_w_up, B_w_down):
    def _A_ref(x, wqkv, wo):
        B, S, D = x.shape
        H = 32; Dh = D // H
        W, dil = 8, 2
        qkv = (lambda x, *d: x.permute(*d))((x @ wqkv).reshape(B, S, 3, H, Dh), 2, 0, 3, 1, 4)
        q, k, v = qkv[0], qkv[1], qkv[2]
        scale = Dh ** -0.5
        pos = torch.arange(S)
        off = torch.arange(W) * dil
        idx = pos[:, None] - off[None, :]
        mask = idx >= 0
        idx_c = torch.where(mask, idx, 0).reshape(-1)
        kg = k[:, :, idx_c, :].reshape(B, H, S, W, Dh)
        vg = v[:, :, idx_c, :].reshape(B, H, S, W, Dh)
        logits = torch.einsum("bhsd,bhswd->bhsw", q, kg) * scale
        logits = torch.where(mask[None, None, :, :], logits, -1e9)
        attn = _softmax(logits, axis=-1)
        o = torch.einsum("bhsw,bhswd->bhsd", attn, vg)
        return (lambda x, *d: x.permute(*d))(o, 0, 2, 1, 3).reshape(B, S, D) @ wo

    def _B_ref(x, w_gate, w_up, w_down):
        return (_gelu(x @ w_gate) * (x @ w_up)) @ w_down

    x = A_x
    xn = _layernorm(x, axis=-1)
    s = _A_ref(xn, A_wqkv, A_wo)
    g = _silu(_B_ref(xn, B_w_gate, B_w_up, B_w_down))
    return x + s * g
```

```python
import struct, sys

NAME = "recurrent_scan__sliding_local_dilated__geglu_ffn__prompt"
S, D, F = 2048, 576, 4608
XN_OFF = 0
XN_SIZE = S * D * 2
QKV_OFF = XN_OFF + XN_SIZE
QKV_SIZE = S * 1728 * 2
HO_OFF = QKV_OFF + QKV_SIZE
HO_SIZE = 32 * 162 * 4096

MIMIC = True


def f2u(x):
    return struct.unpack("<I", struct.pack("<f", x))[0]


def hx(x):
    return "0x%08x" % (x & 0xFFFFFFFF)


class K:
    def __init__(self):
        self.l = []

    def __call__(self, s):
        self.l.append("    " + s)

    def label(self, s):
        self.l.append(s + ":")

    def c(self, s):
        self.l.append("    ; " + s)

    def text(self):
        return "\n".join(self.l) + "\n"


def srd(k, base, lo, hi, size, add=0):
    if add:
        k(f"s_add_u32 s{base}, s{lo}, {hx(add)}")
        k(f"s_addc_u32 s{base+1}, s{hi}, 0")
    else:
        k(f"s_mov_b32 s{base}, s{lo}")
        k(f"s_mov_b32 s{base+1}, s{hi}")
    k(f"s_and_b32 s{base+1}, s{base+1}, 0xffff")
    k(f"s_mov_b32 s{base+2}, {hx(size)}")
    k(f"s_mov_b32 s{base+3}, 0x00020000")


def kernel_header(name):
    return (f".globl {name}\n.p2align 8\n.type {name},@function\n{name}:\n")


def kernel_desc(name, vgpr, accum, sgpr=102):
    return f""".amdhsa_kernel {name}
  .amdhsa_next_free_vgpr {vgpr}
  .amdhsa_next_free_sgpr {sgpr}
  .amdhsa_accum_offset {accum}
  .amdhsa_group_segment_fixed_size 0
  .amdhsa_kernarg_size 80
  .amdhsa_user_sgpr_count 2
  .amdhsa_user_sgpr_kernarg_segment_ptr 1
  .amdhsa_system_sgpr_workgroup_id_x 1
.end_amdhsa_kernel
"""


def gen_k0():
    k = K()
    k("s_cmp_ge_u32 s2, 256")
    k("s_cbranch_scc1 L_k0_done")
    k("s_load_dwordx2 s[4:5], s[0:1], 0")
    k("s_load_dwordx2 s[6:7], s[0:1], 72")
    k("v_lshrrev_b32 v1, 3, v0")
    k("v_and_b32 v2, 7, v0")
    k("s_lshl_b32 s3, s2, 3")
    k("v_add_u32 v3, s3, v1")
    k("v_mul_u32_u24 v4, 1152, v3")
    k("v_lshl_add_u32 v4, v2, 4, v4")
    k("v_lshrrev_b32 v5, 5, v3")
    k("v_mul_u32_u24 v5, 36864, v5")
    k("v_lshrrev_b32 v6, 1, v2")
    k("v_lshl_add_u32 v5, v6, 10, v5")
    k("v_and_b32 v6, 1, v2")
    k("v_lshl_add_u32 v5, v6, 9, v5")
    k("v_and_b32 v6, 31, v3")
    k("v_lshl_add_u32 v5, v6, 4, v5")
    k("s_waitcnt lgkmcnt(0)")
    srd(k, 8, 4, 5, XN_SIZE)
    srd(k, 12, 6, 7, XN_SIZE, XN_OFF)
    for i in range(9):
        k(f"buffer_load_dwordx4 v[{16+4*i}:{19+4*i}], v4, s[8:11], 0 offen offset:{128*i}")
    for i in range(9):
        k(f"s_mov_b32 s{20+i}, {4096*i}")
    k("v_mov_b32 v8, 0")
    k("v_mov_b32 v9, 0")
    for i in range(9):
        k(f"s_waitcnt vmcnt({8-i})")
        for j in range(4):
            r = 16 + 4 * i + j
            o = 64 + 8 * i + 2 * j
            k(f"v_lshlrev_b32 v{o}, 16, v{r}")
            k(f"v_and_b32 v{o+1}, 0xffff0000, v{r}")
            k(f"v_add_f32 v8, v8, v{o}")
            k(f"v_add_f32 v9, v9, v{o+1}")
    k("v_add_f32 v8, v8, v9")

    def red8(r):
        k("s_nop 1")
        k(f"v_add_f32_dpp v{r}, v{r}, v{r} quad_perm:[1,0,3,2] row_mask:0xf bank_mask:0xf")
        k("s_nop 1")
        k(f"v_add_f32_dpp v{r}, v{r}, v{r} quad_perm:[2,3,0,1] row_mask:0xf bank_mask:0xf")
        k("s_nop 1")
        k(f"v_add_f32_dpp v{r}, v{r}, v{r} row_half_mirror row_mask:0xf bank_mask:0xf")
    red8(8)
    k(f"v_mul_f32 v8, {hx(f2u(1.0/576.0))}, v8")
    k("v_mov_b32 v10, 0")
    k("v_mov_b32 v11, 0")
    for e in range(0, 72, 2):
        k(f"v_sub_f32 v12, v{64+e}, v8")
        k(f"v_sub_f32 v13, v{65+e}, v8")
        k("v_fmac_f32 v10, v12, v12")
        k("v_fmac_f32 v11, v13, v13")
    k("v_add_f32 v10, v10, v11")
    red8(10)
    k(f"v_mul_f32 v10, {hx(f2u(1.0/576.0))}, v10")
    k("v_cvt_pk_bf16_f32 v8, v8, v10")
    k("v_and_b32 v10, 0xffff0000, v8")
    k("v_lshlrev_b32 v8, 16, v8")
    k(f"v_add_f32 v10, {hx(f2u(1e-5))}, v10")
    k("v_cvt_pk_bf16_f32 v10, v10, v10")
    k("v_lshlrev_b32 v10, 16, v10")
    k("v_sqrt_f32 v10, v10")
    k("s_nop 0")
    k("v_cvt_pk_bf16_f32 v10, v10, v10")
    k("v_lshlrev_b32 v10, 16, v10")
    k("v_rcp_f32 v10, v10")
    k("s_nop 0")
    for i in range(9):
        for j in range(4):
            o = 64 + 8 * i + 2 * j
            r = 16 + 4 * i + j
            k(f"v_sub_f32 v12, v{o}, v8")
            k(f"v_sub_f32 v13, v{o+1}, v8")
            k("v_cvt_pk_bf16_f32 v12, v12, v13")
            k("v_and_b32 v13, 0xffff0000, v12")
            k("v_lshlrev_b32 v12, 16, v12")
            k("v_mul_f32 v12, v12, v10")
            k("v_mul_f32 v13, v13, v10")
            k(f"v_cvt_pk_bf16_f32 v{r}, v12, v13")
        k(f"buffer_store_dwordx4 v[{16+4*i}:{19+4*i}], v5, s[12:15], s{20+i} offen")
    k.label("L_k0_done")
    k("s_endpgm")
    return k.text()


def gen_k2():
    k = K()
    k("s_cmp_ge_u32 s2, 256")
    k("s_cbranch_scc1 L_k2_done")
    k("s_load_dwordx2 s[6:7], s[0:1], 72")
    k("v_and_b32 v1, 31, v0")
    k("v_lshrrev_b32 v2, 5, v0")
    k("s_lshl_b32 s3, s2, 3")
    k("v_add_u32 v2, s3, v2")
    k("v_mul_u32_u24 v3, 36, v1")
    k("s_waitcnt lgkmcnt(0)")
    srd(k, 8, 6, 7, QKV_SIZE, QKV_OFF)
    srd(k, 12, 6, 7, HO_SIZE, HO_OFF)
    QB, KB, VB = 16, 32, 112
    k("s_movk_i32 s16, 3456")
    for j in range(8):
        k(f"v_subrev_u32 v12, {2*j}, v2")
        k("v_max_i32 v12, 0, v12")
        k(f"v_mad_u32_u24 v{4+j}, v12, s16, v3")
    k(f"buffer_load_dwordx4 v[{QB}:{QB+3}], v4, s[8:11], 0 offen")
    k(f"buffer_load_dwordx4 v[{QB+4}:{QB+7}], v4, s[8:11], 0 offen offset:16")
    k(f"buffer_load_dword v{QB+8}, v4, s[8:11], 0 offen offset:32")
    for j in range(8):
        b = KB + 10 * j
        k(f"buffer_load_dwordx4 v[{b}:{b+3}], v{4+j}, s[8:11], 0 offen offset:1152")
        k(f"buffer_load_dwordx4 v[{b+4}:{b+7}], v{4+j}, s[8:11], 0 offen offset:1168")
        k(f"buffer_load_dword v{b+8}, v{4+j}, s[8:11], 0 offen offset:1184")
    for j in range(8):
        b = VB + 10 * j
        k(f"buffer_load_dwordx4 v[{b}:{b+3}], v{4+j}, s[8:11], 0 offen offset:2304")
        k(f"buffer_load_dwordx4 v[{b+4}:{b+7}], v{4+j}, s[8:11], 0 offen offset:2320")
        k(f"buffer_load_dword v{b+8}, v{4+j}, s[8:11], 0 offen offset:2336")
    k("v_lshrrev_b32 v12, 6, v2")
    k("v_mul_u32_u24 v12, 162, v12")
    k("v_add_u32 v12, 144, v12")
    k("v_lshlrev_b32 v12, 12, v12")
    k("v_bfe_u32 v13, v2, 4, 2")
    k("v_lshl_add_u32 v12, v13, 10, v12")
    k("v_and_b32 v13, 15, v2")
    k("v_lshl_add_u32 v12, v13, 4, v12")
    k("v_mul_u32_u24 v14, 18, v1")
    for t in range(9):
        o = 200 + t
        k(f"v_add_u32 v13, {2*t}, v14")
        k(f"v_lshrrev_b32 v15, 5, v13")
        k(f"v_lshl_add_u32 v{o}, v15, 12, v12")
        k(f"v_bfe_u32 v15, v13, 4, 1")
        k(f"v_lshl_add_u32 v{o}, v15, 9, v{o}")
        k(f"v_bfe_u32 v15, v13, 2, 1")
        k(f"v_lshl_add_u32 v{o}, v15, 8, v{o}")
        k(f"v_bfe_u32 v15, v13, 3, 1")
        k(f"v_lshl_add_u32 v{o}, v15, 3, v{o}")
        k(f"v_and_b32 v15, 3, v13")
        k(f"v_lshl_add_u32 v{o}, v15, 1, v{o}")
    SC = f2u(18 ** -0.5)
    for j in range(8):
        k(f"s_waitcnt vmcnt({24 + 3*(7-j)})")
        b = KB + 10 * j
        L = 210 + j
        k(f"v_dot2_f32_bf16 v{L}, v{QB}, v{b}, 0")
        for t in range(1, 9):
            k(f"v_dot2_f32_bf16 v{L}, v{QB+t}, v{b+t}, v{L}")
    k("s_nop 3")
    for j in range(0, 8, 2):
        L = 210 + j
        k(f"v_cvt_pk_bf16_f32 v12, v{L}, v{L+1}")
        k(f"v_lshlrev_b32 v{L}, 16, v12")
        k(f"v_and_b32 v{L+1}, 0xffff0000, v12")
        k(f"v_mul_f32 v{L}, {hx(SC)}, v{L}")
        k(f"v_mul_f32 v{L+1}, {hx(SC)}, v{L+1}")
        k(f"v_cvt_pk_bf16_f32 v12, v{L}, v{L+1}")
        k(f"v_lshlrev_b32 v{L}, 16, v12")
        k(f"v_and_b32 v{L+1}, 0xffff0000, v12")
    k(f"v_mov_b32 v13, {hx(f2u(-1e9))}")
    for j in range(1, 8):
        k(f"v_cmp_le_u32 vcc, {2*j}, v2")
        k("s_nop 1")
        k(f"v_cndmask_b32 v{210+j}, v13, v{210+j}, vcc")
    k("v_max3_f32 v12, v210, v211, v212")
    k("v_max3_f32 v12, v12, v213, v214")
    k("v_max3_f32 v12, v12, v215, v216")
    k("v_max_f32 v12, v12, v217")
    LOG2E = f2u(1.4426950408889634)
    for j in range(8):
        k(f"v_sub_f32 v{210+j}, v{210+j}, v12")
        k(f"v_mul_f32 v{210+j}, {hx(LOG2E)}, v{210+j}")
        k(f"v_exp_f32 v{210+j}, v{210+j}")
    k("s_nop 0")
    k("v_add_f32 v12, v210, v211")
    k("v_add_f32 v13, v212, v213")
    k("v_add_f32 v14, v214, v215")
    k("v_add_f32 v15, v216, v217")
    k("v_add_f32 v12, v12, v13")
    k("v_add_f32 v14, v14, v15")
    k("v_add_f32 v12, v12, v14")
    k("v_rcp_f32 v12, v12")
    k("s_nop 0")
    for j in range(8):
        k(f"v_mul_f32 v{210+j}, v{210+j}, v12")
    for j in range(0, 8, 2):
        k(f"v_cvt_pk_bf16_f32 v{220+j//2}, v{210+j}, v{211+j}")
    k("s_mov_b32 s17, 0x05040100")
    k("s_mov_b32 s18, 0x07060302")
    k("s_waitcnt vmcnt(0)")
    for t in range(9):
        for jp in range(4):
            a = VB + 10 * (2 * jp) + t
            b = VB + 10 * (2 * jp + 1) + t
            k(f"v_perm_b32 v12, v{b}, v{a}, s17")
            k(f"v_perm_b32 v13, v{b}, v{a}, s18")
            c0 = "0" if jp == 0 else f"v{224+2*t}"
            c1 = "0" if jp == 0 else f"v{225+2*t}"
            k(f"v_dot2_f32_bf16 v{224+2*t}, v12, v{220+jp}, {c0}")
            k(f"v_dot2_f32_bf16 v{225+2*t}, v13, v{220+jp}, {c1}")
    k("s_nop 3")
    for t in range(9):
        k(f"v_cvt_pk_bf16_f32 v{224+2*t}, v{224+2*t}, v{225+2*t}")
        k(f"buffer_store_dword v{224+2*t}, v{200+t}, s[12:15], 0 offen")
    k.label("L_k2_done")
    k("s_endpgm")
    return k.text()


SLOT = 36864
K1_LDS = 4 * SLOT


def gen_k1():
    k = K()
    sW, sNq, sNblk, sD, sQoff, sPoff, sIsUp = 28, 29, 30, 31, 32, 33, 34
    sSoff, sStep, sM0, sSlotRd, sSlotDma, sHoOff, sQkvOff = 35, 36, 37, 38, 39, 40, 41
    sCnt, sNp, sT0, sT1, sStepQ, sStepG, sSzQ, sSzG, sWbase = 42, 43, 44, 45, 46, 47, 48, 49, 50
    sXLo, sXHi = 51, 52
    vLaneRd, vRdCur, vRdNext, vOffQ, vOffG, vOffD, vHoOff, vQkvOff, vC0, vC1, vXnOff = range(1, 12)
    TMP = 16
    ACC = [64, 128]
    XNV = 192
    WF = 224

    def xn_reg(rt, ks):
        idx = rt * 36 + ks
        if idx < 64:
            return f"a[{4*idx}:{4*idx+3}]"
        r = XNV + 4 * (idx - 64)
        return f"v[{r}:{r+3}]"

    def wf(s):
        r = WF + 4 * (s % 4)
        return r

    k("s_cmp_ge_u32 s2, 256")
    k("s_cbranch_scc1 L_k1_done")
    k("s_load_dwordx2 s[4:5], s[0:1], 8")
    k("s_load_dwordx4 s[8:11], s[0:1], 32")
    k("s_load_dwordx2 s[6:7], s[0:1], 72")
    k("v_lshrrev_b32 v12, 6, v0")
    k("s_nop 0")
    k(f"v_readfirstlane_b32 s{sW}, v12")
    k("v_and_b32 v0, 63, v0")
    k(f"s_and_b32 s{sT0}, s2, 7")
    k(f"s_lshr_b32 s{sT1}, s2, 3")
    k(f"s_lshr_b32 s3, s{sT1}, 2")
    k(f"s_and_b32 s{sT1}, s{sT1}, 3")
    k(f"s_lshl_b32 s{sT0}, s{sT0}, 2")
    k(f"s_add_u32 s{sT0}, s{sT0}, s{sT1}")
    k(f"s_cmp_lt_u32 s{sT0}, 16")
    k("s_cbranch_scc0 L_k1_c1")
    k(f"s_mov_b32 s{sNp}, 5")
    k(f"s_mov_b32 s{sNq}, 1")
    k(f"s_mul_i32 s{sPoff}, s{sT0}, 5")
    k(f"s_mov_b32 s{sQoff}, s{sT0}")
    k("s_branch L_k1_cdone")
    k.label("L_k1_c1")
    k(f"s_mov_b32 s{sNp}, 4")
    k(f"s_sub_u32 s{sT1}, s{sT0}, 16")
    k(f"s_lshl_b32 s{sPoff}, s{sT1}, 2")
    k(f"s_add_u32 s{sPoff}, s{sPoff}, 80")
    k(f"s_cmp_lt_u32 s{sT0}, 22")
    k("s_cbranch_scc0 L_k1_c2")
    k(f"s_mov_b32 s{sNq}, 3")
    k(f"s_mul_i32 s{sQoff}, s{sT1}, 3")
    k(f"s_add_u32 s{sQoff}, s{sQoff}, 16")
    k("s_branch L_k1_cdone")
    k.label("L_k1_c2")
    k(f"s_mov_b32 s{sNq}, 2")
    k(f"s_sub_u32 s{sT1}, s{sT0}, 22")
    k(f"s_lshl_b32 s{sQoff}, s{sT1}, 1")
    k(f"s_add_u32 s{sQoff}, s{sQoff}, 34")
    k.label("L_k1_cdone")
    k(f"s_lshl_b32 s{sNblk}, s{sNp}, 1")
    k(f"s_add_u32 s{sNblk}, s{sNblk}, s{sNq}")
    k(f"s_lshl_b32 s{sT1}, s3, 2")
    k(f"s_add_u32 s{sT1}, s{sT1}, s{sW}")
    k(f"s_mul_i32 s{sHoOff}, s{sT1}, 162")
    k(f"s_add_u32 s{sHoOff}, s{sHoOff}, s{sPoff}")
    k(f"s_lshl_b32 s{sHoOff}, s{sHoOff}, 12")
    k(f"s_mul_i32 s{sQkvOff}, s{sT1}, {64*3456}")
    k(f"s_lshl_b32 s{sQoff}, s{sQoff}, 6")
    k(f"s_lshl_b32 s{sPoff}, s{sPoff}, 6")
    k(f"s_add_u32 s{sQkvOff}, s{sQkvOff}, s{sQoff}")
    k(f"s_mul_i32 s{sT1}, s{sT1}, {2*36864}")
    k(f"s_mov_b32 s{sD}, 0")
    k(f"s_mov_b32 s{sIsUp}, 0")
    k(f"s_mov_b32 s{sStepQ}, {16*3456}")
    k(f"s_mov_b32 s{sStepG}, {16*9216}")
    k(f"s_mov_b32 s{sSzQ}, {576*3456}")
    k(f"s_mov_b32 s{sSzG}, {576*9216}")
    k(f"s_mul_i32 s{sWbase}, s{sW}, 9216")
    k(f"s_mov_b32 s{sSlotDma}, 0")
    k(f"s_mov_b32 s{sSlotRd}, 0")
    k("v_lshrrev_b32 v12, 2, v0")
    k(f"s_mul_i32 s{sT0}, s{sW}, 144")
    k(f"v_add_u32 v12, s{sT0}, v12")
    k("v_and_b32 v13, 3, v0")
    k("v_lshlrev_b32 v13, 4, v13")
    k(f"s_movk_i32 s{sT0}, 3456")
    k(f"v_mad_u32_u24 v{vOffQ}, v12, s{sT0}, v13")
    k(f"s_movk_i32 s{sT0}, 9216")
    k(f"v_mad_u32_u24 v{vOffG}, v12, s{sT0}, v13")
    k("v_lshrrev_b32 v12, 5, v0")
    k(f"v_lshlrev_b32 v{vLaneRd}, 9, v12")
    k("v_bfe_u32 v12, v0, 2, 2")
    k(f"v_lshl_add_u32 v{vLaneRd}, v12, 6, v{vLaneRd}")
    k("v_bfe_u32 v12, v0, 4, 1")
    k(f"v_lshl_add_u32 v{vLaneRd}, v12, 5, v{vLaneRd}")
    k("v_and_b32 v12, 3, v0")
    k(f"v_lshl_add_u32 v{vLaneRd}, v12, 3, v{vLaneRd}")
    k(f"v_mov_b32 v{vRdCur}, v{vLaneRd}")
    k(f"v_add_u32 v{vRdNext}, {SLOT}, v{vLaneRd}")
    k("v_bfe_u32 v12, v0, 4, 1")
    k(f"v_lshlrev_b32 v{vHoOff}, 10, v12")
    k("v_lshrrev_b32 v12, 5, v0")
    k(f"v_lshl_add_u32 v{vHoOff}, v12, 8, v{vHoOff}")
    k("v_and_b32 v12, 15, v0")
    k(f"v_lshl_add_u32 v{vHoOff}, v12, 4, v{vHoOff}")
    k("v_and_b32 v12, 31, v0")
    k(f"v_mul_u32_u24 v{vQkvOff}, 3456, v12")
    k("v_lshrrev_b32 v12, 5, v0")
    k(f"v_lshl_add_u32 v{vQkvOff}, v12, 3, v{vQkvOff}")
    k(f"v_lshlrev_b32 v{vXnOff}, 4, v0")
    c = 0.7978845608028654
    L2E = 1.4426950408889634
    k(f"v_mov_b32 v{vC0}, {hx(f2u(-2*c*L2E))}")
    k(f"v_mov_b32 v{vC1}, {hx(f2u(-2*c*0.044715*L2E))}")
    k("s_waitcnt lgkmcnt(0)")
    srd(k, 12, 6, 7, XN_SIZE, XN_OFF)
    srd(k, 16, 6, 7, QKV_SIZE, QKV_OFF)
    srd(k, 20, 6, 7, HO_SIZE, HO_OFF)
    k("s_and_b32 s5, s5, 0xffff")
    k("s_and_b32 s9, s9, 0xffff")
    k("s_and_b32 s11, s11, 0xffff")
    k("s_mov_b32 s27, 0x00020000")

    def dma_setup():
        o = []
        o.append(f"s_cmp_eq_u32 s{sIsUp}, 0")
        o.append(f"s_cselect_b32 s{sXLo}, s8, s10")
        o.append(f"s_cselect_b32 s{sXHi}, s9, s11")
        o.append(f"s_cmp_lt_u32 s{sD}, s{sNq}")
        o.append(f"s_cselect_b32 s24, s4, s{sXLo}")
        o.append(f"s_cselect_b32 s25, s5, s{sXHi}")
        o.append(f"s_cselect_b32 s26, s{sSzQ}, s{sSzG}")
        o.append(f"s_cselect_b32 s{sSoff}, s{sQoff}, s{sPoff}")
        o.append(f"s_cselect_b32 s{sStep}, s{sStepQ}, s{sStepG}")
        o.append(f"s_cselect_b64 vcc, -1, 0")
        o.append(f"s_cselect_b32 s{sT0}, 64, 0")
        o.append(f"s_cselect_b32 s{sXLo}, 0, 1")
        o.append(f"v_cndmask_b32 v{vOffD}, v{vOffG}, v{vOffQ}, vcc")
        o.append(f"s_add_u32 s{sQoff}, s{sQoff}, s{sT0}")
        o.append(f"s_lshl_b32 s{sT0}, s{sIsUp}, 6")
        o.append(f"s_add_u32 s{sPoff}, s{sPoff}, s{sT0}")
        o.append(f"s_xor_b32 s{sIsUp}, s{sIsUp}, s{sXLo}")
        o.append(f"s_cmp_lt_u32 s{sD}, s{sNblk}")
        o.append(f"s_cselect_b32 s26, s26, 0")
        o.append(f"s_add_u32 s{sD}, s{sD}, 1")
        o.append(f"s_add_u32 s{sM0}, s{sSlotDma}, s{sWbase}")
        o.append(f"s_add_u32 s{sSlotDma}, s{sSlotDma}, {SLOT}")
        o.append(f"s_cmp_lt_u32 s{sSlotDma}, {K1_LDS}")
        o.append(f"s_cselect_b32 s{sSlotDma}, s{sSlotDma}, 0")
        return o

    def dma_one(i):
        o = [f"s_mov_b32 m0, s{sM0}",
             f"s_add_u32 s{sM0}, s{sM0}, 1024",
             f"buffer_load_dwordx4 v{vOffD}, s[24:27], s{sSoff} offen lds",
             f"s_add_u32 s{sSoff}, s{sSoff}, s{sStep}"]
        return o

    def xn_load(rt, ks):
        off = rt * 36864 + ks * 1024
        return [f"s_add_u32 s{sCnt}, s{sT1}, {off}",
                f"buffer_load_dwordx4 {xn_reg(rt, ks)}, v{vXnOff}, s[12:15], s{sCnt} offen"]

    def tr_read(step, part, nxt):
        r = wf(step) + 2 * part
        a = vRdNext if nxt else vRdCur
        return f"ds_read_b64_tr_b16 v[{r}:{r+1}], v{a} offset:{(step % 36) * 1024 + part * 256}"

    vm = []

    def emit_vm(instrs, tag):
        for i in instrs:
            k(i)
        vm.append(tag)

    def vm_wait(tag):
        idx = max(i for i, t in enumerate(vm) if t == tag)
        n = len(vm) - 1 - idx
        return min(n, 63)

    for i in dma_setup():
        k(i)
    for i in range(9):
        emit_vm(dma_one(i), "d0")
    for ks in range(12):
        for rt in range(2):
            emit_vm(xn_load(rt, ks), f"x{ks}")
    for i in dma_setup():
        k(i)
    for i in range(9):
        emit_vm(dma_one(i), "d1")
    for ks in range(12, 22):
        for rt in range(2):
            emit_vm(xn_load(rt, ks), f"x{ks}")
    k(f"s_waitcnt vmcnt({vm_wait('d0')})")
    k("s_barrier")
    for s in range(3):
        k(tr_read(s, 0, False))
        k(tr_read(s, 1, False))

    def block_body(acc, fillers, first=False):
        local_vm = 0
        own = []
        setup = dma_setup()
        q = list(fillers)
        per_gap = (len(q) + 59) // 60 if q else 0
        gap = 0
        for s in range(36):
            if first:
                k(f"s_waitcnt vmcnt({vm_wait('x%d' % s)})")
            if s == 33:
                if first:
                    k(f"s_waitcnt vmcnt({vm_wait('d1')})")
                else:
                    k(f"s_waitcnt vmcnt({local_vm})")
                k("s_barrier")
            k("s_waitcnt lgkmcnt(4)")
            for rt in range(2):
                a = acc + 16 * rt
                cin = "0" if s == 0 else f"v[{a}:{a+15}]"
                k(f"v_mfma_f32_32x32x16_bf16 v[{a}:{a+15}], v[{wf(s)}:{wf(s)+3}], {xn_reg(rt, s)}, {cin}")
                k(tr_read(s + 3, rt, s + 3 >= 36))
                if s == 0 and rt == 0:
                    for i in setup:
                        k(i)
                if rt == 1 and s % 3 == 1 and s // 3 < 9:
                    for i in dma_one(s // 3):
                        k(i)
                    local_vm += 1
                    if first:
                        vm.append("d2")
                if first and rt == 0 and s + 22 < 36:
                    for r2 in range(2):
                        emit_vm(xn_load(r2, s + 22), f"x{s+22}")
                if gap >= 6:
                    for _ in range(per_gap):
                        if q:
                            ins = q.pop(0)
                            k(ins)
                            if ins.startswith("buffer_"):
                                local_vm += 1
                gap += 1
        assert not q, len(q)
        k(f"v_mov_b32 v{vRdCur}, v{vRdNext}")
        k(f"s_add_u32 s{sSlotRd}, s{sSlotRd}, {SLOT}")
        k(f"s_cmp_lt_u32 s{sSlotRd}, {K1_LDS}")
        k(f"s_cselect_b32 s{sSlotRd}, s{sSlotRd}, 0")
        k(f"s_add_u32 s{sT0}, s{sSlotRd}, {SLOT}")
        k(f"s_cmp_lt_u32 s{sT0}, {K1_LDS}")
        k(f"s_cselect_b32 s{sT0}, s{sT0}, 0")
        k(f"v_add_u32 v{vRdNext}, s{sT0}, v{vLaneRd}")

    def q_epilogue(acc):
        k("s_nop 7")
        k("s_nop 7")
        t = TMP
        for rt in range(2):
            for g in range(4):
                a = acc + 16 * rt + 4 * g
                k(f"v_cvt_pk_bf16_f32 v{t}, v{a}, v{a+1}")
                k(f"v_cvt_pk_bf16_f32 v{t+1}, v{a+2}, v{a+3}")
                k(f"buffer_store_dwordx2 v[{t}:{t+1}], v{vQkvOff}, s[16:19], s{sQkvOff} offen offset:{16*g}"
                  if rt == 0 else
                  f"buffer_store_dwordx2 v[{t}:{t+1}], v{vQkvOff}, s[16:19], s{sT0} offen offset:{16*g}")
                t += 2
            if rt == 0:
                k(f"s_add_u32 s{sT0}, s{sQkvOff}, {32*3456}")
        k(f"s_add_u32 s{sQkvOff}, s{sQkvOff}, 64")

    def p_epilogue_instrs(accset):
        o = []
        for rt in range(2):
            for p in range(2):
                pk = TMP + 24 + 4 * ((rt * 2 + p) % 2)
                for pr in range(4):
                    g0 = accset + 16 * rt + 8 * p + 2 * pr
                    u0 = g0 + 32
                    t = TMP + 8 * (pr % 2)
                    if MIMIC:
                        o.append(f"v_cvt_pk_bf16_f32 v{t+6}, v{g0}, v{g0+1}")
                        o.append(f"v_cvt_pk_bf16_f32 v{t+7}, v{u0}, v{u0+1}")
                        o.append(f"v_lshlrev_b32 v{t+4}, 16, v{t+6}")
                        o.append(f"v_and_b32 v{t+5}, 0xffff0000, v{t+6}")
                        G0, G1 = t + 4, t + 5
                    else:
                        G0, G1 = g0, g0 + 1
                    o.append(f"v_mul_f32 v{t}, v{G0}, v{G0}")
                    o.append(f"v_mul_f32 v{t+1}, v{G1}, v{G1}")
                    o.append(f"v_fma_f32 v{t}, v{t}, v{vC1}, v{vC0}")
                    o.append(f"v_fma_f32 v{t+1}, v{t+1}, v{vC1}, v{vC0}")
                    o.append(f"v_mul_f32 v{t}, v{t}, v{G0}")
                    o.append(f"v_mul_f32 v{t+1}, v{t+1}, v{G1}")
                    o.append(f"v_exp_f32 v{t}, v{t}")
                    o.append(f"v_exp_f32 v{t+1}, v{t+1}")
                    if MIMIC:
                        o.append(f"v_lshlrev_b32 v{t+2}, 16, v{t+7}")
                    else:
                        o.append("s_nop 0")
                    o.append(f"v_add_f32 v{t}, 1.0, v{t}")
                    o.append(f"v_add_f32 v{t+1}, 1.0, v{t+1}")
                    o.append(f"v_rcp_f32 v{t}, v{t}")
                    o.append(f"v_rcp_f32 v{t+1}, v{t+1}")
                    if MIMIC:
                        o.append(f"v_and_b32 v{t+3}, 0xffff0000, v{t+7}")
                    else:
                        o.append("s_nop 0")
                    o.append(f"v_mul_f32 v{t}, v{t}, v{G0}")
                    o.append(f"v_mul_f32 v{t+1}, v{t+1}, v{G1}")
                    if MIMIC:
                        o.append(f"v_cvt_pk_bf16_f32 v{t+6}, v{t}, v{t+1}")
                        o.append(f"v_lshlrev_b32 v{t}, 16, v{t+6}")
                        o.append(f"v_and_b32 v{t+1}, 0xffff0000, v{t+6}")
                        o.append(f"v_mul_f32 v{t}, v{t}, v{t+2}")
                        o.append(f"v_mul_f32 v{t+1}, v{t+1}, v{t+3}")
                    else:
                        o.append(f"v_mul_f32 v{t}, v{t}, v{u0}")
                        o.append(f"v_mul_f32 v{t+1}, v{t+1}, v{u0+1}")
                    o.append(f"v_cvt_pk_bf16_f32 v{pk+pr}, v{t}, v{t+1}")
                o.append(f"buffer_store_dwordx4 v[{pk}:{pk+3}], v{vHoOff}, s[20:23], s{sHoOff} offen offset:{rt*2048 + p*512}")
        o.append(f"s_add_u32 s{sHoOff}, s{sHoOff}, 4096")
        return o

    def pair_body(accset, epi):
        if epi:
            h = len(epi) // 2
            f0, f1 = epi[:h], epi[h:]
        else:
            f0, f1 = [], []
        block_body(accset, f0)
        block_body(accset + 32, f1)

    block_body(ACC[0], [], first=True)
    q_epilogue(ACC[0])
    k(f"s_mov_b32 s{sCnt}, 1")
    k.label("L_k1_qloop")
    k(f"s_cmp_ge_u32 s{sCnt}, s{sNq}")
    k("s_cbranch_scc1 L_k1_qdone")
    block_body(ACC[0], [])
    q_epilogue(ACC[0])
    k(f"s_add_u32 s{sCnt}, s{sCnt}, 1")
    k("s_branch L_k1_qloop")
    k.label("L_k1_qdone")
    pair_body(ACC[0], None)
    k(f"s_mov_b32 s{sCnt}, 1")
    k.label("L_k1_ploop")
    pair_body(ACC[1], p_epilogue_instrs(ACC[0]))
    k(f"s_add_u32 s{sCnt}, s{sCnt}, 1")
    k(f"s_cmp_ge_u32 s{sCnt}, s{sNp}")
    k("s_cbranch_scc1 L_k1_endB")
    pair_body(ACC[0], p_epilogue_instrs(ACC[1]))
    k(f"s_add_u32 s{sCnt}, s{sCnt}, 1")
    k(f"s_cmp_ge_u32 s{sCnt}, s{sNp}")
    k("s_cbranch_scc0 L_k1_ploop")
    k("s_nop 7")
    k("s_nop 7")
    for i in p_epilogue_instrs(ACC[0]):
        k(i)
    k("s_branch L_k1_done")
    k.label("L_k1_endB")
    k("s_nop 7")
    k("s_nop 7")
    for i in p_epilogue_instrs(ACC[1]):
        k(i)
    k.label("L_k1_done")
    k("s_endpgm")
    return k.text()


K3_STG = 3
K3_WSLOT = 9216
K3_LDS = max(4 * K3_STG * K3_WSLOT + 1024, 4 * 3 * 5 * 1024 + 3 * 5 * 1024 + 1024)


def gen_k3():
    k = K()
    sW, sRb, sNt, sD0, sNY, sNS, sCnt, sT0, sT1 = 28, 29, 30, 31, 32, 33, 34, 35, 36
    sHoff, sWoff, sM0b, sDn, sLim = 37, 38, 39, 40, 41
    vLaneRd, vH, vX = 1, 2, 3
    vDma = 4
    ACCY = 16
    ACCS = 96
    HB = 176
    WFR = 176
    TMP = 216

    k("s_cmp_ge_u32 s2, 256")
    k("s_cbranch_scc1 L_k3_done")
    k("s_load_dwordx2 s[4:5], s[0:1], 0")
    k("s_load_dwordx2 s[6:7], s[0:1], 16")
    k("s_load_dwordx4 s[8:11], s[0:1], 48")
    k("s_load_dwordx2 s[12:13], s[0:1], 72")
    k("v_lshrrev_b32 v13, 6, v0")
    k("s_nop 0")
    k(f"v_readfirstlane_b32 s{sW}, v13")
    k("v_and_b32 v0, 63, v0")
    k(f"s_and_b32 s{sT0}, s2, 7")
    k(f"s_lshr_b32 s{sT1}, s2, 3")
    k(f"s_and_b32 s{sNt}, s{sT1}, 7")
    k(f"s_lshr_b32 s{sT1}, s{sT1}, 3")
    k(f"s_lshl_b32 s{sRb}, s{sT0}, 2")
    k(f"s_add_u32 s{sRb}, s{sRb}, s{sT1}")
    k(f"s_mul_i32 s{sD0}, s{sW}, 20")
    k(f"s_cmp_eq_u32 s{sW}, 0")
    k(f"s_cselect_b32 s{sT0}, 0, 1")
    k(f"s_cselect_b32 s{sNY}, 21, 20")
    k(f"s_add_u32 s{sD0}, s{sD0}, s{sT0}")
    k(f"s_cmp_eq_u32 s{sW}, 3")
    k(f"s_cselect_b32 s{sNY}, 11, s{sNY}")
    k(f"s_cselect_b32 s{sNS}, 9, 0")
    k(f"s_mul_i32 s{sT0}, s{sNt}, 144")
    k(f"s_mov_b32 s{sT1}, {(1 << 32) // 9 + 1}")
    k("s_movk_i32 s42, 1152")
    for i in range(9):
        k(f"v_add_u32 v13, {64*i}, v0")
        k(f"v_mul_hi_u32 v14, v13, s{sT1}")
        k("v_mul_u32_u24 v15, 9, v14")
        k("v_sub_u32 v15, v13, v15")
        k("v_lshlrev_b32 v15, 4, v15")
        k(f"v_mad_u32_u24 v{vDma+i}, v14, s42, v15")
        k(f"v_add_u32 v{vDma+i}, s{sT0}, v{vDma+i}")
    k("v_lshrrev_b32 v13, 5, v0")
    k("v_lshlrev_b32 v13, 4, v13")
    k("v_bfe_u32 v14, v0, 4, 1")
    k("v_lshl_add_u32 v13, v14, 2, v13")
    k("v_bfe_u32 v14, v0, 2, 2")
    k("v_add_u32 v13, v13, v14")
    k("v_mul_u32_u24 v13, 144, v13")
    k("v_and_b32 v14, 3, v0")
    k(f"v_lshl_add_u32 v{vLaneRd}, v14, 3, v13")
    k(f"s_mul_i32 s{sM0b}, s{sW}, {K3_STG*K3_WSLOT}")
    k(f"v_add_u32 v{vLaneRd}, s{sM0b}, v{vLaneRd}")
    k(f"v_lshlrev_b32 v{vH}, 4, v0")
    k("s_waitcnt lgkmcnt(0)")
    srd(k, 16, 12, 13, HO_SIZE, HO_OFF)
    srd(k, 20, 8, 9, F * D * 2)
    srd(k, 24, 6, 7, D * D * 2)
    srd(k, 44, 4, 5, XN_SIZE)
    srd(k, 48, 10, 11, XN_SIZE)
    k("s_mov_b32 s55, 0x00020000")
    k(f"s_mul_i32 s{sHoff}, s{sRb}, 162")
    k(f"s_lshl_b32 s{sT0}, s{sD0}, 1")
    k(f"s_add_u32 s{sHoff}, s{sHoff}, s{sT0}")
    k(f"s_lshl_b32 s{sHoff}, s{sHoff}, 12")
    k(f"s_mov_b32 s{sDn}, s{sD0}")
    k(f"s_add_u32 s{sLim}, s{sD0}, s{sNY}")
    k(f"s_add_u32 s{sLim}, s{sLim}, s{sNS}")

    def issue(st):
        k(f"s_cmp_lt_u32 s{sDn}, 72")
        k("s_cselect_b32 s52, s20, s24")
        k("s_cselect_b32 s53, s21, s25")
        k("s_cselect_b32 s54, s22, s26")
        k(f"s_cselect_b32 s{sT0}, 0, 72")
        k(f"s_sub_u32 s{sT0}, s{sDn}, s{sT0}")
        k(f"s_mul_i32 s{sWoff}, s{sT0}, {64*1152}")
        k(f"s_cmp_lt_u32 s{sDn}, s{sLim}")
        k("s_cselect_b32 s54, s54, 0")
        k(f"s_cselect_b32 s18, {hx(HO_SIZE)}, 0")
        k(f"s_add_u32 s{sT0}, s{sM0b}, {st*K3_WSLOT}")
        for i in range(9):
            k(f"s_mov_b32 m0, s{sT0}")
            k(f"s_add_u32 s{sT0}, s{sT0}, 1024")
            k(f"buffer_load_dwordx4 v{vDma+i}, s[52:55], s{sWoff} offen lds")
        for j in range(8):
            r = 32 * st + 4 * j
            if j == 4:
                k(f"s_add_u32 s{sT1}, s{sHoff}, 4096")
            so = sHoff if j < 4 else sT1
            k(f"buffer_load_dwordx4 a[{r}:{r+3}], v{vH}, s[16:19], s{so} offen offset:{1024*(j%4)}")
        k(f"s_add_u32 s{sHoff}, s{sHoff}, 8192")
        k(f"s_add_u32 s{sDn}, s{sDn}, 1")

    def compute(st, acc):
        base = st * K3_WSLOT
        for s in range(2):
            for ct in range(5):
                r = WFR + 4 * (5 * s + ct)
                for part in range(2):
                    k(f"ds_read_b64_tr_b16 v[{r+2*part}:{r+2*part+1}], v{vLaneRd} offset:{base + s*32*144 + part*8*144 + ct*32}")
        for s in range(2):
            for ct in range(5):
                k(f"s_waitcnt lgkmcnt({min(15, 18 - 2*(5*s+ct))})")
                r = WFR + 4 * (5 * s + ct)
                for mt in range(4):
                    a = acc + 4 * (mt * 5 + ct)
                    h = 32 * st + 16 * s + 4 * mt
                    k(f"v_mfma_f32_16x16x32_bf16 v[{a}:{a+3}], v[{r}:{r+3}], a[{h}:{h+3}], v[{a}:{a+3}]")

    for r in range(ACCY, ACCY + 160):
        k(f"v_mov_b32 v{r}, 0")
    for st in range(K3_STG):
        issue(st)

    def loop(name, acc, cntreg, nxt):
        pass

    def emit_loop(tag, acc, cnt, exits):
        for st in range(K3_STG):
            k.label(f"L_k3_{tag}{st}")
            k(f"s_cmp_eq_u32 s{cnt}, 0")
            k(f"s_cbranch_scc1 {exits[st]}")
            k(f"s_sub_u32 s{cnt}, s{cnt}, 1")
            k(f"s_waitcnt vmcnt({17*(K3_STG-1)})")
            compute(st, acc)
            issue(st)
        k(f"s_branch L_k3_{tag}0")

    emit_loop("y", ACCY, sNY, [f"L_k3_s{st}" for st in range(K3_STG)])
    emit_loop("s", ACCS, sNS, ["L_k3_red"] * K3_STG)
    k.label("L_k3_red")
    k("s_waitcnt vmcnt(0)")
    k("s_barrier")
    k(f"v_lshlrev_b32 v{TMP}, 4, v0")
    k(f"s_mul_i32 s{sT0}, s{sW}, {20*1024}")
    k(f"v_add_u32 v{TMP+1}, s{sT0}, v{TMP}")
    k("s_nop 7")
    for mt in range(4):
        for ct in range(5):
            a = ACCY + 4 * (mt * 5 + ct)
            k(f"ds_write_b128 v{TMP+1}, v[{a}:{a+3}] offset:{(mt*5+ct)*1024}")
    k(f"s_cmp_eq_u32 s{sW}, 3")
    k("s_cbranch_scc0 L_k3_nos")
    k(f"v_add_u32 v{TMP+2}, {80*1024}, v{TMP}")
    for mt in range(4):
        for ct in range(5):
            a = ACCS + 4 * (mt * 5 + ct)
            k(f"ds_write_b128 v{TMP+2}, v[{a}:{a+3}] offset:{(mt*5+ct)*1024}")
    k.label("L_k3_nos")
    k(f"s_lshl_b32 s{sT0}, s{sRb}, 6")
    k(f"s_lshl_b32 s{sT1}, s{sW}, 4")
    k(f"s_add_u32 s{sT0}, s{sT0}, s{sT1}")
    k("v_and_b32 v13, 15, v0")
    k(f"v_add_u32 v13, s{sT0}, v13")
    k("v_mul_u32_u24 v13, 1152, v13")
    k("v_lshrrev_b32 v14, 4, v0")
    k("v_lshl_add_u32 v13, v14, 3, v13")
    k(f"s_mul_i32 s{sT0}, s{sNt}, 144")
    k(f"v_add_u32 v{vX}, s{sT0}, v13")
    XR = TMP + 4
    for ct in range(5):
        k(f"buffer_load_dwordx2 v[{XR+2*ct}:{XR+2*ct+1}], v{vX}, s[44:47], 0 offen offset:{32*ct}")
    k("s_waitcnt lgkmcnt(0)")
    k("s_barrier")
    k(f"s_mul_i32 s{sT0}, s{sW}, {5*1024}")
    k(f"v_add_u32 v{TMP+1}, s{sT0}, v{TMP}")
    k(f"v_add_u32 v{TMP+3}, {40*1024}, v{TMP+1}")
    for src in range(4):
        for ct in range(5):
            a = ACCY + 4 * (src * 5 + ct)
            b = TMP + 1 if src < 2 else TMP + 3
            k(f"ds_read_b128 v[{a}:{a+3}], v{b} offset:{(src%2)*20*1024 + ct*1024}")
    k(f"v_add_u32 v{TMP+2}, {80*1024}, v{TMP+1}")
    for ct in range(5):
        a = ACCS + 4 * ct
        k(f"ds_read_b128 v[{a}:{a+3}], v{TMP+2} offset:{ct*1024}")
    k("s_waitcnt lgkmcnt(0)")
    for ct in range(5):
        for r in range(4):
            a = ACCY + 4 * ct + r
            k(f"v_add_f32 v{a}, v{a}, v{a+20}")
            k(f"v_add_f32 v{a+40}, v{a+40}, v{a+60}")
            k(f"v_add_f32 v{a}, v{a}, v{a+40}")
    k("s_waitcnt vmcnt(0)")
    L2E = f2u(-1.4426950408889634)
    for ct in range(5):
        for pr in range(2):
            y0 = ACCY + 4 * ct + 2 * pr
            s0 = ACCS + 4 * ct + 2 * pr
            t = 176
            k(f"v_cvt_pk_bf16_f32 v{t}, v{y0}, v{y0+1}")
            k(f"v_cvt_pk_bf16_f32 v{t+1}, v{s0}, v{s0+1}")
            k(f"v_lshlrev_b32 v{t+2}, 16, v{t}")
            k(f"v_and_b32 v{t+3}, 0xffff0000, v{t}")
            k(f"v_mul_f32 v{t+4}, {hx(L2E)}, v{t+2}")
            k(f"v_mul_f32 v{t+5}, {hx(L2E)}, v{t+3}")
            k(f"v_exp_f32 v{t+4}, v{t+4}")
            k(f"v_exp_f32 v{t+5}, v{t+5}")
            k(f"v_lshlrev_b32 v{t+6}, 16, v{t+1}")
            k(f"v_add_f32 v{t+4}, 1.0, v{t+4}")
            k(f"v_add_f32 v{t+5}, 1.0, v{t+5}")
            k(f"v_rcp_f32 v{t+4}, v{t+4}")
            k(f"v_rcp_f32 v{t+5}, v{t+5}")
            k(f"v_and_b32 v{t+7}, 0xffff0000, v{t+1}")
            k(f"v_mul_f32 v{t+4}, v{t+4}, v{t+2}")
            k(f"v_mul_f32 v{t+5}, v{t+5}, v{t+3}")
            k(f"v_cvt_pk_bf16_f32 v{t}, v{t+4}, v{t+5}")
            k(f"v_lshlrev_b32 v{t+4}, 16, v{t}")
            k(f"v_and_b32 v{t+5}, 0xffff0000, v{t}")
            k(f"v_mul_f32 v{t+4}, v{t+4}, v{t+6}")
            k(f"v_mul_f32 v{t+5}, v{t+5}, v{t+7}")
            k(f"v_cvt_pk_bf16_f32 v{t}, v{t+4}, v{t+5}")
            k(f"v_lshlrev_b32 v{t+4}, 16, v{t}")
            k(f"v_and_b32 v{t+5}, 0xffff0000, v{t}")
            xr = XR + 2 * ct + pr
            k(f"v_lshlrev_b32 v{t+6}, 16, v{xr}")
            k(f"v_and_b32 v{t+7}, 0xffff0000, v{xr}")
            k(f"v_add_f32 v{t+4}, v{t+4}, v{t+6}")
            k(f"v_add_f32 v{t+5}, v{t+5}, v{t+7}")
            k(f"v_cvt_pk_bf16_f32 v{xr}, v{t+4}, v{t+5}")
        if ct == 4:
            k("v_cmp_gt_u32 vcc, 32, v0")
            k("s_and_saveexec_b64 s[56:57], vcc")
        k(f"buffer_store_dwordx2 v[{XR+2*ct}:{XR+2*ct+1}], v{vX}, s[48:51], 0 offen offset:{32*ct}")
    k.label("L_k3_done")
    k("s_endpgm")
    return k.text()


def main():
    ref = open(f"cdna_kernels/{NAME}.s.ref").read().splitlines()
    head = []
    for line in ref:
        if line.startswith("; @launch") or line.startswith("; Override") or line.startswith("; grid="):
            continue
        if not line.startswith(";"):
            break
        head.append(line)
    out = "\n".join(head) + "\n"
    out += "; @launch kernel=k0_ln_kernel grid=(256,1,1) block=(64,1,1) lds=0\n"
    out += f"; @launch kernel=k1_gemm1_kernel grid=(256,1,1) block=(256,1,1) lds={K1_LDS}\n"
    out += "; @launch kernel=k2_attn_kernel grid=(256,1,1) block=(256,1,1) lds=0\n"
    out += f"; @launch kernel=k3_gemm2_kernel grid=(256,1,1) block=(256,1,1) lds={K3_LDS}\n"
    out += '.amdgcn_target "amdgcn-amd-amdhsa--gfx950"\n.text\n'
    out += kernel_header("k0_ln_kernel") + gen_k0()
    out += kernel_header("k1_gemm1_kernel") + gen_k1()
    out += kernel_header("k2_attn_kernel") + gen_k2()
    out += kernel_header("k3_gemm2_kernel") + gen_k3()
    out += '.section .rodata,"a"\n.p2align 6\n'
    out += kernel_desc("k0_ln_kernel", 136, 136)
    out += ".p2align 6\n" + kernel_desc("k1_gemm1_kernel", 512, 256)
    out += ".p2align 6\n" + kernel_desc("k2_attn_kernel", 256, 256)
    out += ".p2align 6\n" + kernel_desc("k3_gemm2_kernel", 512, 256)
    path = sys.argv[1] if len(sys.argv) > 1 else f"cdna_kernels/{NAME}.s"
    open(path, "w").write(out)
    print("wrote", path, len(out), "bytes")


if __name__ == "__main__":
    main()
```

```python
import struct, sys

NAME = "recurrent_scan__sliding_local_dilated__geglu_ffn__prompt"
S, D, F = 2048, 576, 4608
XN_OFF = 0
XN_SIZE = S * D * 2
QKV_OFF = XN_OFF + XN_SIZE
QKV_SIZE = S * 1728 * 2
HO_OFF = QKV_OFF + QKV_SIZE
HO_SIZE = 32 * 162 * 4096

STAMP = False
STAMPK = [a for a in sys.argv if a.startswith("--stamp")]
STAMP_OFF = 48 << 20
SC = " sc1" if "--sc1" in sys.argv else ""
if "--nt" in sys.argv:
    SC = " nt"
if "--sc01" in sys.argv:
    SC = " sc0 sc1"
MIMIC = True


def f2u(x):
    return struct.unpack("<I", struct.pack("<f", x))[0]


def hx(x):
    return "0x%08x" % (x & 0xFFFFFFFF)


class K:
    def __init__(self):
        self.l = []

    def __call__(self, s):
        self.l.append("    " + s)

    def label(self, s):
        self.l.append(s + ":")

    def c(self, s):
        self.l.append("    ; " + s)

    def text(self):
        return "\n".join(self.l) + "\n"


def srd(k, base, lo, hi, size, add=0):
    if add:
        k(f"s_add_u32 s{base}, s{lo}, {hx(add)}")
        k(f"s_addc_u32 s{base+1}, s{hi}, 0")
    else:
        k(f"s_mov_b32 s{base}, s{lo}")
        k(f"s_mov_b32 s{base+1}, s{hi}")
    k(f"s_and_b32 s{base+1}, s{base+1}, 0xffff")
    k(f"s_mov_b32 s{base+2}, {hx(size)}")
    k(f"s_mov_b32 s{base+3}, 0x00020000")


def stamp_init(k, wslo, wshi, wavereg):
    if not STAMP:
        return
    srd(k, 92, wslo, wshi, 1 << 20, STAMP_OFF)
    k(f"s_lshl_b32 s97, s2, 2")
    k(f"s_add_u32 s97, s97, s{wavereg}")
    k(f"s_lshl_b32 s97, s97, 8")
    k(f"s_mov_b32 s96, 0")
    k(f"s_movk_i32 s100, 248")
    stamp_rt(k, 250)


def stamp(k, vt):
    if not STAMP:
        return
    k("s_memrealtime s[98:99]" if "--rt" in sys.argv else "s_memtime s[98:99]")
    k("s_waitcnt lgkmcnt(0)")
    k(f"v_mov_b32 v{vt}, s98")
    k(f"v_mov_b32 v{vt+1}, s97")
    k(f"buffer_store_dword v{vt}, v{vt+1}, s[92:95], s96 offen")
    k("s_add_u32 s96, s96, 4")


def stamp_rt(k, vt):
    if not STAMP:
        return
    k("s_memrealtime s[98:99]")
    k("s_waitcnt lgkmcnt(0)")
    k(f"v_mov_b32 v{vt}, s98")
    k(f"v_mov_b32 v{vt+1}, s97")
    k(f"buffer_store_dword v{vt}, v{vt+1}, s[92:95], s100 offen")
    k("s_add_u32 s100, s100, 4")


def kernel_header(name):
    return (f".globl {name}\n.p2align 8\n.type {name},@function\n{name}:\n")


def kernel_desc(name, vgpr, accum, sgpr=102):
    return f""".amdhsa_kernel {name}
  .amdhsa_next_free_vgpr {vgpr}
  .amdhsa_next_free_sgpr {sgpr}
  .amdhsa_accum_offset {accum}
  .amdhsa_group_segment_fixed_size 0
  .amdhsa_kernarg_size 80
  .amdhsa_user_sgpr_count 2
  .amdhsa_user_sgpr_kernarg_segment_ptr 1
  .amdhsa_system_sgpr_workgroup_id_x 1
.end_amdhsa_kernel
"""


def gen_k0():
    k = K()
    k("s_cmp_ge_u32 s2, 256")
    k("s_cbranch_scc1 L_k0_done")
    k("s_load_dwordx2 s[4:5], s[0:1], 0")
    k("s_load_dwordx2 s[6:7], s[0:1], 72")
    k("s_load_dwordx2 s[32:33], s[0:1], 8")
    k("s_load_dwordx4 s[36:39], s[0:1], 32")
    k("v_lshrrev_b32 v1, 6, v0")
    k("s_nop 0")
    k("v_readfirstlane_b32 s30, v1")
    k("v_and_b32 v0, 63, v0")
    k("v_lshlrev_b32 v7, 4, v0")
    k("s_cmp_eq_u32 s30, 0")
    k("s_cbranch_scc1 L_k0_ln")
    k("s_mul_i32 s31, s2, 3")
    k("s_add_u32 s31, s31, s30")
    k("s_sub_u32 s31, s31, 1")
    k("s_waitcnt lgkmcnt(0)")
    if "--nopf0" not in sys.argv:
        srd(k, 40, 32, 33, 576 * 3456)
        srd(k, 44, 36, 37, 576 * 9216)
        srd(k, 48, 38, 39, 576 * 9216)
        k("s_mul_i32 s34, s31, 3072")
        k("s_mul_i32 s35, s31, 7168")
        k("s_add_u32 s52, s35, 4096")
        for i in range(3):
            k(f"buffer_load_dwordx4 v[140:143], v7, s[40:43], s34 offen offset:{1024*i}")
        for i in range(7):
            so = 35 if i < 4 else 52
            k(f"buffer_load_dwordx4 v[140:143], v7, s[44:47], s{so} offen offset:{1024*(i%4)}")
            k(f"buffer_load_dwordx4 v[144:147], v7, s[48:51], s{so} offen offset:{1024*(i%4)}")
    k("s_branch L_k0_wait")
    k.label("L_k0_ln")
    k("v_lshrrev_b32 v1, 3, v0")
    k("v_and_b32 v2, 7, v0")
    k("s_lshl_b32 s3, s2, 3")
    k("v_add_u32 v3, s3, v1")
    k("v_mul_u32_u24 v4, 1152, v3")
    k("v_lshl_add_u32 v4, v2, 4, v4")
    k("v_lshrrev_b32 v5, 5, v3")
    k("v_mul_u32_u24 v5, 36864, v5")
    k("v_lshrrev_b32 v6, 1, v2")
    k("v_lshl_add_u32 v5, v6, 10, v5")
    k("v_and_b32 v6, 1, v2")
    k("v_lshl_add_u32 v5, v6, 9, v5")
    k("v_and_b32 v6, 31, v3")
    k("v_lshl_add_u32 v5, v6, 4, v5")
    k("s_waitcnt lgkmcnt(0)")
    srd(k, 8, 4, 5, XN_SIZE)
    srd(k, 12, 6, 7, XN_SIZE, XN_OFF)
    for i in range(9):
        k(f"buffer_load_dwordx4 v[{16+4*i}:{19+4*i}], v4, s[8:11], 0 offen offset:{128*i}")
    for i in range(9):
        k(f"s_mov_b32 s{20+i}, {4096*i}")
    k("v_mov_b32 v8, 0")
    k("v_mov_b32 v9, 0")
    for i in range(9):
        k(f"s_waitcnt vmcnt({8-i})")
        for j in range(4):
            r = 16 + 4 * i + j
            o = 64 + 8 * i + 2 * j
            k(f"v_lshlrev_b32 v{o}, 16, v{r}")
            k(f"v_and_b32 v{o+1}, 0xffff0000, v{r}")
            k(f"v_add_f32 v8, v8, v{o}")
            k(f"v_add_f32 v9, v9, v{o+1}")
    k("v_add_f32 v8, v8, v9")

    def red8(r):
        k("s_nop 1")
        k(f"v_add_f32_dpp v{r}, v{r}, v{r} quad_perm:[1,0,3,2] row_mask:0xf bank_mask:0xf")
        k("s_nop 1")
        k(f"v_add_f32_dpp v{r}, v{r}, v{r} quad_perm:[2,3,0,1] row_mask:0xf bank_mask:0xf")
        k("s_nop 1")
        k(f"v_add_f32_dpp v{r}, v{r}, v{r} row_half_mirror row_mask:0xf bank_mask:0xf")
    red8(8)
    k(f"v_mul_f32 v8, {hx(f2u(1.0/576.0))}, v8")
    k("v_mov_b32 v10, 0")
    k("v_mov_b32 v11, 0")
    for e in range(0, 72, 2):
        k(f"v_sub_f32 v12, v{64+e}, v8")
        k(f"v_sub_f32 v13, v{65+e}, v8")
        k("v_fmac_f32 v10, v12, v12")
        k("v_fmac_f32 v11, v13, v13")
    k("v_add_f32 v10, v10, v11")
    red8(10)
    k(f"v_mul_f32 v10, {hx(f2u(1.0/576.0))}, v10")
    k("v_cvt_pk_bf16_f32 v8, v8, v10")
    k("v_and_b32 v10, 0xffff0000, v8")
    k("v_lshlrev_b32 v8, 16, v8")
    k(f"v_add_f32 v10, {hx(f2u(1e-5))}, v10")
    k("v_cvt_pk_bf16_f32 v10, v10, v10")
    k("v_lshlrev_b32 v10, 16, v10")
    k("v_sqrt_f32 v10, v10")
    k("s_nop 0")
    k("v_cvt_pk_bf16_f32 v10, v10, v10")
    k("v_lshlrev_b32 v10, 16, v10")
    k("v_rcp_f32 v10, v10")
    k("s_nop 0")
    for i in range(9):
        for j in range(4):
            o = 64 + 8 * i + 2 * j
            r = 16 + 4 * i + j
            k(f"v_sub_f32 v12, v{o}, v8")
            k(f"v_sub_f32 v13, v{o+1}, v8")
            k("v_cvt_pk_bf16_f32 v12, v12, v13")
            k("v_and_b32 v13, 0xffff0000, v12")
            k("v_lshlrev_b32 v12, 16, v12")
            k("v_mul_f32 v12, v12, v10")
            k("v_mul_f32 v13, v13, v10")
            k(f"v_cvt_pk_bf16_f32 v{r}, v12, v13")
        k(f"buffer_store_dwordx4 v[{16+4*i}:{19+4*i}], v5, s[12:15], s{20+i} offen")
    k.label("L_k0_wait")
    k("s_waitcnt vmcnt(0)")
    k.label("L_k0_done")
    k("s_endpgm")
    return k.text()


def gen_k2():
    k = K()
    k("s_cmp_ge_u32 s2, 256")
    k("s_cbranch_scc1 L_k2_done")
    k("s_load_dwordx2 s[6:7], s[0:1], 72")
    k("v_and_b32 v1, 31, v0")
    k("v_lshrrev_b32 v2, 5, v0")
    k("s_lshl_b32 s3, s2, 3")
    k("v_add_u32 v2, s3, v2")
    k("v_mul_u32_u24 v3, 36, v1")
    k("s_waitcnt lgkmcnt(0)")
    srd(k, 8, 6, 7, QKV_SIZE, QKV_OFF)
    srd(k, 12, 6, 7, HO_SIZE, HO_OFF)
    QB, KB, VB = 16, 32, 112
    k("s_movk_i32 s16, 3456")
    for j in range(8):
        k(f"v_subrev_u32 v12, {2*j}, v2")
        k("v_max_i32 v12, 0, v12")
        k(f"v_mad_u32_u24 v{4+j}, v12, s16, v3")
    k(f"buffer_load_dwordx4 v[{QB}:{QB+3}], v4, s[8:11], 0 offen")
    k(f"buffer_load_dwordx4 v[{QB+4}:{QB+7}], v4, s[8:11], 0 offen offset:16")
    k(f"buffer_load_dword v{QB+8}, v4, s[8:11], 0 offen offset:32")
    for j in range(8):
        b = KB + 10 * j
        k(f"buffer_load_dwordx4 v[{b}:{b+3}], v{4+j}, s[8:11], 0 offen offset:1152")
        k(f"buffer_load_dwordx4 v[{b+4}:{b+7}], v{4+j}, s[8:11], 0 offen offset:1168")
        k(f"buffer_load_dword v{b+8}, v{4+j}, s[8:11], 0 offen offset:1184")
    for j in range(8):
        b = VB + 10 * j
        k(f"buffer_load_dwordx4 v[{b}:{b+3}], v{4+j}, s[8:11], 0 offen offset:2304")
        k(f"buffer_load_dwordx4 v[{b+4}:{b+7}], v{4+j}, s[8:11], 0 offen offset:2320")
        k(f"buffer_load_dword v{b+8}, v{4+j}, s[8:11], 0 offen offset:2336")
    k("v_lshrrev_b32 v12, 6, v2")
    k("v_mul_u32_u24 v12, 162, v12")
    k("v_add_u32 v12, 144, v12")
    k("v_lshlrev_b32 v12, 12, v12")
    k("v_bfe_u32 v13, v2, 4, 2")
    k("v_lshl_add_u32 v12, v13, 10, v12")
    k("v_and_b32 v13, 15, v2")
    k("v_lshl_add_u32 v12, v13, 4, v12")
    k("v_mul_u32_u24 v14, 18, v1")
    for t in range(9):
        o = 200 + t
        k(f"v_add_u32 v13, {2*t}, v14")
        k(f"v_lshrrev_b32 v15, 5, v13")
        k(f"v_lshl_add_u32 v{o}, v15, 12, v12")
        k(f"v_bfe_u32 v15, v13, 4, 1")
        k(f"v_lshl_add_u32 v{o}, v15, 9, v{o}")
        k(f"v_bfe_u32 v15, v13, 2, 1")
        k(f"v_lshl_add_u32 v{o}, v15, 8, v{o}")
        k(f"v_bfe_u32 v15, v13, 3, 1")
        k(f"v_lshl_add_u32 v{o}, v15, 3, v{o}")
        k(f"v_and_b32 v15, 3, v13")
        k(f"v_lshl_add_u32 v{o}, v15, 1, v{o}")
    SC = f2u(18 ** -0.5)
    for j in range(8):
        k(f"s_waitcnt vmcnt({24 + 3*(7-j)})")
        b = KB + 10 * j
        L = 210 + j
        k(f"v_dot2_f32_bf16 v{L}, v{QB}, v{b}, 0")
        for t in range(1, 9):
            k(f"v_dot2_f32_bf16 v{L}, v{QB+t}, v{b+t}, v{L}")
    k("s_nop 3")
    for j in range(0, 8, 2):
        L = 210 + j
        k(f"v_cvt_pk_bf16_f32 v12, v{L}, v{L+1}")
        k(f"v_lshlrev_b32 v{L}, 16, v12")
        k(f"v_and_b32 v{L+1}, 0xffff0000, v12")
        k(f"v_mul_f32 v{L}, {hx(SC)}, v{L}")
        k(f"v_mul_f32 v{L+1}, {hx(SC)}, v{L+1}")
        k(f"v_cvt_pk_bf16_f32 v12, v{L}, v{L+1}")
        k(f"v_lshlrev_b32 v{L}, 16, v12")
        k(f"v_and_b32 v{L+1}, 0xffff0000, v12")
    k(f"v_mov_b32 v13, {hx(f2u(-1e9))}")
    for j in range(1, 8):
        k(f"v_cmp_le_u32 vcc, {2*j}, v2")
        k("s_nop 1")
        k(f"v_cndmask_b32 v{210+j}, v13, v{210+j}, vcc")
    k("v_max3_f32 v12, v210, v211, v212")
    k("v_max3_f32 v12, v12, v213, v214")
    k("v_max3_f32 v12, v12, v215, v216")
    k("v_max_f32 v12, v12, v217")
    LOG2E = f2u(1.4426950408889634)
    for j in range(8):
        k(f"v_sub_f32 v{210+j}, v{210+j}, v12")
        k(f"v_mul_f32 v{210+j}, {hx(LOG2E)}, v{210+j}")
        k(f"v_exp_f32 v{210+j}, v{210+j}")
    k("s_nop 0")
    k("v_add_f32 v12, v210, v211")
    k("v_add_f32 v13, v212, v213")
    k("v_add_f32 v14, v214, v215")
    k("v_add_f32 v15, v216, v217")
    k("v_add_f32 v12, v12, v13")
    k("v_add_f32 v14, v14, v15")
    k("v_add_f32 v12, v12, v14")
    k("v_rcp_f32 v12, v12")
    k("s_nop 0")
    for j in range(8):
        k(f"v_mul_f32 v{210+j}, v{210+j}, v12")
    for j in range(0, 8, 2):
        k(f"v_cvt_pk_bf16_f32 v{220+j//2}, v{210+j}, v{211+j}")
    k("s_mov_b32 s17, 0x05040100")
    k("s_mov_b32 s18, 0x07060302")
    k("s_waitcnt vmcnt(0)")
    for t in range(9):
        for jp in range(4):
            a = VB + 10 * (2 * jp) + t
            b = VB + 10 * (2 * jp + 1) + t
            k(f"v_perm_b32 v12, v{b}, v{a}, s17")
            k(f"v_perm_b32 v13, v{b}, v{a}, s18")
            c0 = "0" if jp == 0 else f"v{224+2*t}"
            c1 = "0" if jp == 0 else f"v{225+2*t}"
            k(f"v_dot2_f32_bf16 v{224+2*t}, v12, v{220+jp}, {c0}")
            k(f"v_dot2_f32_bf16 v{225+2*t}, v13, v{220+jp}, {c1}")
    k("s_nop 3")
    for t in range(9):
        k(f"v_cvt_pk_bf16_f32 v{224+2*t}, v{224+2*t}, v{225+2*t}")
        k(f"buffer_store_dword v{224+2*t}, v{200+t}, s[12:15], 0 offen")
    k.label("L_k2_done")
    k("s_endpgm")
    return k.text()


SLOT = 36864
K1_LDS = 4 * SLOT


def gen_k1():
    global STAMP
    STAMP = "--stamp1" in sys.argv
    k = K()
    sW, sNq, sNblk, sD, sQoff, sPoff, sIsUp = 28, 29, 30, 31, 32, 33, 34
    sSoff, sStep, sM0, sSlotRd, sSlotDma, sHoOff, sQkvOff = 35, 36, 37, 38, 39, 40, 41
    sCnt, sNp, sT0, sT1, sStepQ, sStepG, sSzQ, sSzG, sWbase = 42, 43, 44, 45, 46, 47, 48, 49, 50
    sXLo, sXHi, sNp2, sXn, sJq, sJg, sQkvOff2 = 51, 52, 53, 54, 55, 56, 57
    vLaneRd, vRdCur, vRdNext, vOffQ, vOffG, vOffD, vHoOff, vQkvOff, vC0, vC1, vXnOff = range(1, 12)
    TMP = 16
    QT = 48
    ACC = [64, 128]
    XNV = 192
    WF = 224
    JF = 16

    def xn_reg(rt, ks):
        idx = rt * 36 + ks
        if idx < 64:
            return f"a[{4*idx}:{4*idx+3}]"
        r = XNV + 4 * (idx - 64)
        return f"v[{r}:{r+3}]"

    def wf(s):
        return WF + 4 * (s % 4)

    k("s_cmp_ge_u32 s2, 256")
    k("s_cbranch_scc1 L_k1_done")
    k("s_load_dwordx2 s[4:5], s[0:1], 8")
    k("s_load_dwordx4 s[8:11], s[0:1], 32")
    k("s_load_dwordx2 s[6:7], s[0:1], 72")
    k("s_load_dwordx2 s[64:65], s[0:1], 48")
    k("s_load_dwordx2 s[66:67], s[0:1], 16")
    k("v_lshrrev_b32 v12, 6, v0")
    k("s_nop 0")
    k(f"v_readfirstlane_b32 s{sW}, v12")
    k("v_and_b32 v0, 63, v0")
    k(f"s_and_b32 s{sT0}, s2, 7")
    k(f"s_lshr_b32 s{sT1}, s2, 3")
    k(f"s_lshr_b32 s3, s{sT1}, 2")
    k(f"s_and_b32 s{sT1}, s{sT1}, 3")
    k(f"s_lshl_b32 s{sT0}, s{sT0}, 2")
    k(f"s_add_u32 s{sT0}, s{sT0}, s{sT1}")
    k(f"s_cmp_lt_u32 s{sT0}, 16")
    k("s_cbranch_scc0 L_k1_c1")
    k(f"s_mov_b32 s{sNp}, 5")
    k(f"s_mov_b32 s{sNq}, 1")
    k(f"s_mul_i32 s{sPoff}, s{sT0}, 5")
    k(f"s_mov_b32 s{sQoff}, s{sT0}")
    k("s_branch L_k1_cdone")
    k.label("L_k1_c1")
    k(f"s_mov_b32 s{sNp}, 4")
    k(f"s_sub_u32 s{sT1}, s{sT0}, 16")
    k(f"s_lshl_b32 s{sPoff}, s{sT1}, 2")
    k(f"s_add_u32 s{sPoff}, s{sPoff}, 80")
    k(f"s_cmp_lt_u32 s{sT0}, 22")
    k("s_cbranch_scc0 L_k1_c2")
    k(f"s_mov_b32 s{sNq}, 3")
    k(f"s_mul_i32 s{sQoff}, s{sT1}, 3")
    k(f"s_add_u32 s{sQoff}, s{sQoff}, 16")
    k("s_branch L_k1_cdone")
    k.label("L_k1_c2")
    k(f"s_mov_b32 s{sNq}, 2")
    k(f"s_sub_u32 s{sT1}, s{sT0}, 22")
    k(f"s_lshl_b32 s{sQoff}, s{sT1}, 1")
    k(f"s_add_u32 s{sQoff}, s{sQoff}, 34")
    k.label("L_k1_cdone")
    k(f"s_lshl_b32 s{sNp2}, s{sNp}, 1")
    k(f"s_add_u32 s{sNblk}, s{sNp2}, s{sNq}")
    k(f"s_lshl_b32 s{sT1}, s3, 2")
    k(f"s_add_u32 s{sT1}, s{sT1}, s{sW}")
    k(f"s_mul_i32 s{sHoOff}, s{sT1}, 162")
    k(f"s_add_u32 s{sHoOff}, s{sHoOff}, s{sPoff}")
    k(f"s_lshl_b32 s{sHoOff}, s{sHoOff}, 12")
    k(f"s_mul_i32 s{sQkvOff}, s{sT1}, {64*3456}")
    k(f"s_lshl_b32 s{sQoff}, s{sQoff}, 6")
    k(f"s_lshl_b32 s{sPoff}, s{sPoff}, 6")
    k(f"s_add_u32 s{sQkvOff}, s{sQkvOff}, s{sQoff}")
    k(f"s_add_u32 s{sQkvOff2}, s{sQkvOff}, {32*3456}")
    k(f"s_mul_i32 s{sXn}, s{sT1}, {2*36864}")
    k(f"s_mov_b32 s{sJq}, s{sQoff}")
    k(f"s_mov_b32 s{sJg}, s{sPoff}")
    k(f"s_mov_b32 s{sD}, 3")
    k(f"s_mov_b32 s{sIsUp}, 0")
    k(f"s_add_u32 s{sQoff}, s{sQoff}, 64")
    k(f"s_add_u32 s{sPoff}, s{sPoff}, 64")
    k(f"s_mov_b32 s{sStepQ}, {64*3456}")
    k(f"s_mov_b32 s{sStepG}, {64*9216}")
    k(f"s_mov_b32 s{sSzQ}, {576*3456}")
    k(f"s_mov_b32 s{sSzG}, {576*9216}")
    k(f"s_lshl_b32 s{sWbase}, s{sW}, 10")
    k(f"s_mov_b32 s{sSlotDma}, {3*SLOT}")
    k(f"s_mov_b32 s{sSlotRd}, {3*SLOT}")
    k("v_lshrrev_b32 v12, 2, v0")
    k(f"s_lshl_b32 s{sT0}, s{sW}, 4")
    k(f"v_add_u32 v12, s{sT0}, v12")
    k("v_and_b32 v13, 3, v0")
    k("v_lshlrev_b32 v13, 4, v13")
    k(f"s_movk_i32 s{sT0}, 3456")
    k(f"v_mad_u32_u24 v{vOffQ}, v12, s{sT0}, v13")
    k(f"s_movk_i32 s{sT0}, 9216")
    k(f"v_mad_u32_u24 v{vOffG}, v12, s{sT0}, v13")
    k("v_lshrrev_b32 v12, 5, v0")
    k(f"v_lshlrev_b32 v{vLaneRd}, 9, v12")
    k("v_bfe_u32 v12, v0, 2, 2")
    k(f"v_lshl_add_u32 v{vLaneRd}, v12, 6, v{vLaneRd}")
    k("v_bfe_u32 v12, v0, 4, 1")
    k(f"v_lshl_add_u32 v{vLaneRd}, v12, 5, v{vLaneRd}")
    k("v_and_b32 v12, 3, v0")
    k(f"v_lshl_add_u32 v{vLaneRd}, v12, 3, v{vLaneRd}")
    k(f"v_add_u32 v{vRdCur}, {SLOT}, v{vLaneRd}")
    k(f"v_add_u32 v{vOffD}, {2*SLOT}, v{vLaneRd}")
    k(f"v_add_u32 v{vRdNext}, {3*SLOT}, v{vLaneRd}")
    k("v_bfe_u32 v12, v0, 4, 1")
    k(f"v_lshlrev_b32 v{vHoOff}, 10, v12")
    k("v_lshrrev_b32 v12, 5, v0")
    k(f"v_lshl_add_u32 v{vHoOff}, v12, 8, v{vHoOff}")
    k("v_and_b32 v12, 15, v0")
    k(f"v_lshl_add_u32 v{vHoOff}, v12, 4, v{vHoOff}")
    k("v_and_b32 v12, 31, v0")
    k(f"v_mul_u32_u24 v{vQkvOff}, 3456, v12")
    k("v_lshrrev_b32 v12, 5, v0")
    k(f"v_lshl_add_u32 v{vQkvOff}, v12, 3, v{vQkvOff}")
    k(f"v_lshlrev_b32 v{vXnOff}, 4, v0")
    c = 0.7978845608028654
    L2E = 1.4426950408889634
    k(f"v_mov_b32 v{vC0}, {hx(f2u(-2*c*L2E))}")
    k(f"v_mov_b32 v{vC1}, {hx(f2u(-2*c*0.044715*L2E))}")
    k("s_waitcnt lgkmcnt(0)")
    srd(k, 12, 6, 7, XN_SIZE, XN_OFF)
    srd(k, 16, 6, 7, QKV_SIZE, QKV_OFF)
    srd(k, 20, 6, 7, HO_SIZE, HO_OFF)
    k("s_and_b32 s5, s5, 0xffff")
    k("s_and_b32 s9, s9, 0xffff")
    k("s_and_b32 s11, s11, 0xffff")
    srd(k, 24, 8, 9, 576 * 9216)
    srd(k, 80, 4, 5, 576 * 3456)
    srd(k, 84, 8, 9, 576 * 9216)
    srd(k, 88, 10, 11, 576 * 9216)
    srd(k, 68, 64, 65, F * D * 2)
    srd(k, 72, 66, 67, D * D * 2)
    k("s_lshl_b32 s76, s2, 2")
    k(f"s_add_u32 s76, s76, s{sW}")
    k("s_lshl_b32 s77, s76, 10")
    k("s_mul_i32 s76, s76, 6144")
    stamp_init(k, 6, 7, sW)
    stamp(k, 250)

    def dma_setup():
        o = []
        o.append(f"s_cmp_eq_u32 s{sIsUp}, 0")
        o.append(f"s_cselect_b32 s{sXLo}, s8, s10")
        o.append(f"s_cselect_b32 s{sXHi}, s9, s11")
        o.append(f"s_sub_u32 s{sT0}, s{sD}, 1")
        o.append(f"s_cmp_ge_u32 s{sT0}, s{sNp2}")
        o.append(f"s_cselect_b32 s24, s4, s{sXLo}")
        o.append(f"s_cselect_b32 s25, s5, s{sXHi}")
        o.append(f"s_cselect_b32 s26, s{sSzQ}, s{sSzG}")
        o.append(f"s_cselect_b32 s{sSoff}, s{sQoff}, s{sPoff}")
        o.append(f"s_cselect_b32 s{sStep}, s{sStepQ}, s{sStepG}")
        o.append(f"s_cselect_b64 vcc, -1, 0")
        o.append(f"s_cselect_b32 s{sT0}, 64, 0")
        o.append(f"s_cselect_b32 s{sXLo}, 0, 1")
        o.append(f"v_cndmask_b32 v{vOffD}, v{vOffG}, v{vOffQ}, vcc")
        o.append(f"s_add_u32 s{sQoff}, s{sQoff}, s{sT0}")
        o.append(f"s_lshl_b32 s{sT0}, s{sIsUp}, 6")
        o.append(f"s_add_u32 s{sPoff}, s{sPoff}, s{sT0}")
        o.append(f"s_xor_b32 s{sIsUp}, s{sIsUp}, s{sXLo}")
        o.append(f"s_cmp_lt_u32 s{sD}, s{sNblk}")
        o.append(f"s_cselect_b32 s26, s26, 0")
        o.append(f"s_add_u32 s{sD}, s{sD}, 1")
        o.append(f"s_add_u32 s{sM0}, s{sSlotDma}, s{sWbase}")
        o.append(f"s_add_u32 s{sSlotDma}, s{sSlotDma}, {SLOT}")
        o.append(f"s_cmp_lt_u32 s{sSlotDma}, {K1_LDS}")
        o.append(f"s_cselect_b32 s{sSlotDma}, s{sSlotDma}, 0")
        return o

    def dma_one():
        return [f"s_mov_b32 m0, s{sM0}",
                f"s_add_u32 s{sM0}, s{sM0}, 4096",
                f"buffer_load_dwordx4 v{vOffD}, s[24:27], s{sSoff} offen lds",
                f"s_add_u32 s{sSoff}, s{sSoff}, s{sStep}"]

    def xn_load(rt, ks):
        off = rt * 36864 + ks * 1024
        return [f"s_add_u32 s{sCnt}, s{sXn}, {off}",
                f"buffer_load_dwordx4 {xn_reg(rt, ks)}, v{vXnOff}, s[12:15], s{sCnt} offen"]

    def tr_read(step, part, nxt):
        r = wf(step) + 2 * part
        a = vRdNext if nxt else vRdCur
        return f"ds_read_b64_tr_b16 v[{r}:{r+1}], v{a} offset:{(step % 36) * 1024 + part * 256}"

    vm = []

    def emit_vm(instrs, tag):
        for i in instrs:
            k(i)
        vm.append(tag)

    def vm_wait(tag):
        idx = max(i for i, t in enumerate(vm) if t == tag)
        return min(len(vm) - 1 - idx, 63)

    def j_group_ops(g):
        ops = []
        for b, (sr, so, vo, stp) in enumerate([(80, sJq, vOffQ, sStepQ), (84, sJg, vOffG, None), (88, sJg, vOffG, sStepG)]):
            ins = [f"s_add_u32 s{sT0}, s{sWbase}, {b*SLOT + g*4096}",
                   f"s_mov_b32 m0, s{sT0}",
                   "s_nop 0",
                   f"buffer_load_dwordx4 v{vo}, s[{sr}:{sr+3}], s{so} offen lds"]
            if stp is not None:
                ins.append(f"s_add_u32 s{so}, s{so}, s{stp}")
            ops.append((ins, f"g{g}"))
        for ks in range(4 * g, 4 * g + 4):
            for rt in range(2):
                ops.append((xn_load(rt, ks), f"x{ks}"))
        return ops

    JPRE = 2

    def blk_chunk(sr, slot, g):
        return [f"s_add_u32 s{sT0}, s{sWbase}, {slot*SLOT + g*4096}",
                f"s_mov_b32 m0, s{sT0}",
                f"s_add_u32 s{sT1}, s{sPoff}, {g*64*9216}",
                f"buffer_load_dwordx4 v{vOffG}, s[{sr}:{sr+3}], s{sT1} offen lds"]

    def j_all_ops(g):
        return j_group_ops(g) + [(blk_chunk(84, 3, g), "d3")]

    for g in range(JPRE):
        for ins, tag in j_all_ops(g):
            emit_vm(ins, tag)
    jbase = [vLaneRd, vRdCur, vOffD]
    jacc = [ACC[1], ACC[0], ACC[0] + 32]

    def j_read(step, b, part):
        r = JF + 12 * (step & 1) + 4 * b + 2 * part
        return f"ds_read_b64_tr_b16 v[{r}:{r+1}], v{jbase[b]} offset:{step*1024 + part*256}"

    k(f"s_waitcnt vmcnt({vm_wait('g0')})")
    k("s_barrier")
    stamp(k, 250)
    for b in range(3):
        for part in range(2):
            k(j_read(0, b, part))
    pend = []
    for s in range(36):
        g = s // 4
        if s % 4 == 0 and g + JPRE < 9:
            pend += j_all_ops(g + JPRE)
        if s % 4 == 0 and g >= 2:
            pend.append((blk_chunk(88, 0, g - 2), "d4"))
        k(f"s_waitcnt vmcnt({vm_wait('x%d' % s)})")
        if (s + 1) % 4 == 0 and s + 1 < 36:
            k(f"s_waitcnt vmcnt({vm_wait('g%d' % ((s + 1) // 4))})")
            k("s_barrier")
        if s == 33:
            k(f"s_waitcnt vmcnt({vm_wait('d3')})")
            k("s_barrier")
        k("s_waitcnt lgkmcnt(0)")
        n = 0
        for b in range(3):
            for rt in range(2):
                a = jacc[b] + 16 * rt
                cin = "0" if s == 0 else f"v[{a}:{a+15}]"
                r = JF + 12 * (s & 1) + 4 * b
                k(f"v_mfma_f32_32x32x16_bf16 v[{a}:{a+15}], v[{r}:{r+3}], {xn_reg(rt, s)}, {cin}")
                if s + 1 < 36:
                    k(j_read(s + 1, b, rt))
                if s >= 33 and b == 0:
                    k(tr_read(s - 33, rt, True))
                if pend and n < 4:
                    ins, tag = pend.pop(0)
                    emit_vm(ins, tag)
                n += 1
    assert not pend
    k(f"v_mov_b32 v{vRdCur}, v{vRdNext}")
    k("s_barrier")
    for g in (7, 8):
        for i in blk_chunk(88, 0, g):
            k(i)
    k(f"s_mov_b32 s{sIsUp}, 0")
    k(f"s_mov_b32 s{sD}, 5")
    k(f"s_add_u32 s{sPoff}, s{sPoff}, 64")
    k(f"s_mov_b32 s{sSlotDma}, {SLOT}")
    stamp(k, 250)

    def rdnext_update():
        return [f"s_add_u32 s{sSlotRd}, s{sSlotRd}, {SLOT}",
                f"s_cmp_lt_u32 s{sSlotRd}, {K1_LDS}",
                f"s_cselect_b32 s{sSlotRd}, s{sSlotRd}, 0",
                f"v_add_u32 v{vRdNext}, s{sSlotRd}, v{vLaneRd}"]

    def block_body(acc, fillers, ndma=1):
        own = []
        gap0 = 0
        if ndma == 2:
            own.append((0, dma_setup()))
            for i in range(9):
                own.append((1 + i, dma_one()))
            gap0 = 12
        st = dma_setup()
        for i in range(0, len(st), 4):
            own.append((gap0 + i // 4, st[i:i + 4]))
        for i in range(9):
            own.append((gap0 + 8 + 5 * i, dma_one()))
        own.append((60, rdnext_update()))
        q = list(fillers)
        per_gap = (len(q) + 57) // 58 if q else 0
        nvm_after_first = 0
        seen_first = 0
        local_vm = 0
        gap = 0
        for s in range(36):
            if s == 33:
                k(f"s_waitcnt vmcnt({local_vm - 9 if ndma == 2 else local_vm})")
                k("s_barrier")
            k("s_waitcnt lgkmcnt(4)")
            for rt in range(2):
                a = acc + 16 * rt
                cin = "0" if s == 0 else f"v[{a}:{a+15}]"
                k(f"v_mfma_f32_32x32x16_bf16 v[{a}:{a+15}], v[{wf(s)}:{wf(s)+3}], {xn_reg(rt, s)}, {cin}")
                k(tr_read(s + 3, rt, s + 3 >= 36))
                while own and own[0][0] <= gap:
                    for ins in own.pop(0)[1]:
                        k(ins)
                        if ins.startswith("buffer_"):
                            local_vm += 1
                if gap >= (12 if ndma == 2 else 6):
                    for _ in range(per_gap):
                        if q:
                            ins = q.pop(0)
                            k(ins)
                            if ins.startswith("buffer_"):
                                local_vm += 1
                gap += 1
        assert not q and not own, (len(q), len(own))
        k(f"v_mov_b32 v{vRdCur}, v{vRdNext}")
        stamp(k, 250)

    def q_convert(acc):
        k("s_nop 7")
        k("s_nop 7")
        for rt in range(2):
            for g in range(4):
                a = acc + 16 * rt + 4 * g
                t = QT + 8 * rt + 2 * g
                k(f"v_cvt_pk_bf16_f32 v{t}, v{a}, v{a+1}")
                k(f"v_cvt_pk_bf16_f32 v{t+1}, v{a+2}, v{a+3}")

    def q_stores(pad=0):
        o = []
        for rt in range(2):
            for g in range(4):
                t = QT + 8 * rt + 2 * g
                so = sQkvOff if rt == 0 else sQkvOff2
                o.append(f"buffer_store_dwordx2 v[{t}:{t+1}], v{vQkvOff}, s[16:19], s{so} offen offset:{16*g}{SC}")
                o += ["s_nop 0"] * pad
        o.append(f"s_add_u32 s{sQkvOff}, s{sQkvOff}, 64")
        o.append(f"s_add_u32 s{sQkvOff2}, s{sQkvOff2}, 64")
        return o

    def p_epilogue_instrs(accset):
        o = []
        for rt in range(2):
            for p in range(2):
                pk = TMP + 24 + 4 * ((rt * 2 + p) % 2)
                for pr in range(4):
                    g0 = accset + 16 * rt + 8 * p + 2 * pr
                    u0 = g0 + 32
                    t = TMP + 8 * (pr % 2)
                    if MIMIC:
                        o.append(f"v_cvt_pk_bf16_f32 v{t+6}, v{g0}, v{g0+1}")
                        o.append(f"v_cvt_pk_bf16_f32 v{t+7}, v{u0}, v{u0+1}")
                        o.append(f"v_lshlrev_b32 v{t+4}, 16, v{t+6}")
                        o.append(f"v_and_b32 v{t+5}, 0xffff0000, v{t+6}")
                        G0, G1 = t + 4, t + 5
                    else:
                        G0, G1 = g0, g0 + 1
                    o.append(f"v_mul_f32 v{t}, v{G0}, v{G0}")
                    o.append(f"v_mul_f32 v{t+1}, v{G1}, v{G1}")
                    o.append(f"v_fma_f32 v{t}, v{t}, v{vC1}, v{vC0}")
                    o.append(f"v_fma_f32 v{t+1}, v{t+1}, v{vC1}, v{vC0}")
                    o.append(f"v_mul_f32 v{t}, v{t}, v{G0}")
                    o.append(f"v_mul_f32 v{t+1}, v{t+1}, v{G1}")
                    o.append(f"v_exp_f32 v{t}, v{t}")
                    o.append(f"v_exp_f32 v{t+1}, v{t+1}")
                    if MIMIC:
                        o.append(f"v_lshlrev_b32 v{t+2}, 16, v{t+7}")
                    else:
                        o.append("s_nop 0")
                    o.append(f"v_add_f32 v{t}, 1.0, v{t}")
                    o.append(f"v_add_f32 v{t+1}, 1.0, v{t+1}")
                    o.append(f"v_rcp_f32 v{t}, v{t}")
                    o.append(f"v_rcp_f32 v{t+1}, v{t+1}")
                    if MIMIC:
                        o.append(f"v_and_b32 v{t+3}, 0xffff0000, v{t+7}")
                    else:
                        o.append("s_nop 0")
                    o.append(f"v_mul_f32 v{t}, v{t}, v{G0}")
                    o.append(f"v_mul_f32 v{t+1}, v{t+1}, v{G1}")
                    if MIMIC:
                        o.append(f"v_cvt_pk_bf16_f32 v{t+6}, v{t}, v{t+1}")
                        o.append(f"v_lshlrev_b32 v{t}, 16, v{t+6}")
                        o.append(f"v_and_b32 v{t+1}, 0xffff0000, v{t+6}")
                        o.append(f"v_mul_f32 v{t}, v{t}, v{t+2}")
                        o.append(f"v_mul_f32 v{t+1}, v{t+1}, v{t+3}")
                    else:
                        o.append(f"v_mul_f32 v{t}, v{t}, v{u0}")
                        o.append(f"v_mul_f32 v{t+1}, v{t+1}, v{u0+1}")
                    o.append(f"v_cvt_pk_bf16_f32 v{pk+pr}, v{t}, v{t+1}")
                o.append(f"buffer_store_dwordx4 v[{pk}:{pk+3}], v{vHoOff}, s[20:23], s{sHoOff} offen offset:{rt*2048 + p*512}{SC}")
        o.append(f"s_add_u32 s{sHoOff}, s{sHoOff}, 4096")
        return o

    def merge(a, b):
        out = []
        step = max(1, len(a) // (len(b) + 1))
        bi = 0
        for i, x in enumerate(a):
            out.append(x)
            if (i + 1) % step == 0 and bi < len(b):
                out.append(b[bi]); bi += 1
        out += b[bi:]
        return out

    def pair_body(accset, epi, extra0=None, extra1=None, ndma=1):
        h = len(epi) // 2
        f0, f1 = epi[:h], epi[h:]
        if extra0:
            f0 = merge(f0, extra0)
        if extra1:
            f1 = merge(f1, extra1)
        block_body(accset, f0, ndma)
        block_body(accset + 32, f1)

    q_convert(ACC[1])
    pf = []
    for i in range(6):
        if i % 4 == 0 and i:
            pf.append("s_add_u32 s76, s76, 4096")
        pf.append(f"buffer_load_dwordx4 v[240:243], v{vXnOff}, s[68:71], s76 offen offset:{1024*(i%4)}")
    pf.append(f"buffer_load_dwordx4 v[240:243], v{vXnOff}, s[72:75], s77 offen")
    pair_body(ACC[1], p_epilogue_instrs(ACC[0]), q_stores(), pf)
    k(f"s_mov_b32 s{sCnt}, 2")
    k.label("L_k1_ploop")
    pair_body(ACC[0], p_epilogue_instrs(ACC[1]))
    k(f"s_add_u32 s{sCnt}, s{sCnt}, 1")
    k(f"s_cmp_ge_u32 s{sCnt}, s{sNp}")
    k("s_cbranch_scc1 L_k1_endA")
    pair_body(ACC[1], p_epilogue_instrs(ACC[0]))
    k(f"s_add_u32 s{sCnt}, s{sCnt}, 1")
    k(f"s_cmp_ge_u32 s{sCnt}, s{sNp}")
    k("s_cbranch_scc0 L_k1_ploop")
    k("s_nop 7")
    k("s_nop 7")
    for i in p_epilogue_instrs(ACC[1]):
        k(i)
    k("s_branch L_k1_qtail")
    k.label("L_k1_endA")
    k("s_nop 7")
    k("s_nop 7")
    for i in p_epilogue_instrs(ACC[0]):
        k(i)
    k.label("L_k1_qtail")
    stamp(k, 250)
    k(f"s_cmp_lt_u32 s{sNq}, 2")
    k("s_cbranch_scc1 L_k1_fin")
    block_body(ACC[0], [])
    q_convert(ACC[0])
    k(f"s_cmp_lt_u32 s{sNq}, 3")
    k("s_cbranch_scc1 L_k1_qst")
    block_body(ACC[0], q_stores(6))
    q_convert(ACC[0])
    k.label("L_k1_qst")
    for i in q_stores():
        k(i)
    k.label("L_k1_fin")
    stamp(k, 250)
    stamp_rt(k, 250)
    k.label("L_k1_done")
    k("s_endpgm")
    return k.text()


K3_R = 8
K3_PF = 6
K3_LDS = max(4 * K3_R * 4096, 100 * 1024)
K3_GRID = 240


def gen_k3():
    global STAMP
    STAMP = "--stamp3" in sys.argv
    k = K()
    sW, sRb, sNt, sS0, sNY, sNS, sT0, sT1 = 28, 29, 30, 31, 32, 33, 35, 36
    sWoff, sM0b, sLd, sLim = 38, 39, 40, 41
    sH = 60
    vRd = 1
    vH, vX, vDma = 5, 6, 7
    ACCY, ACCS, WFR, TMP = 16, 96, 176, 216

    k(f"s_cmp_ge_u32 s2, {K3_GRID}")
    k("s_cbranch_scc1 L_k3_done")
    k("s_and_b32 s3, s2, 7")
    k("s_mul_i32 s3, s3, 30")
    k(f"s_lshr_b32 s{sT1}, s2, 3")
    k(f"s_add_u32 s3, s3, s{sT1}")
    k("s_cmp_ge_u32 s3, 234")
    k("s_cbranch_scc1 L_k3_done")
    k("s_load_dwordx2 s[4:5], s[0:1], 0")
    k("s_load_dwordx2 s[6:7], s[0:1], 16")
    k("s_load_dwordx4 s[8:11], s[0:1], 48")
    k("s_load_dwordx2 s[12:13], s[0:1], 72")
    k("v_lshrrev_b32 v13, 6, v0")
    k("s_nop 0")
    k(f"v_readfirstlane_b32 s{sW}, v13")
    k("v_and_b32 v0, 63, v0")
    k(f"s_mul_hi_u32 s{sRb}, s3, {(1 << 32) // 9 + 1}")
    k(f"s_mul_i32 s{sT0}, s{sRb}, 9")
    k(f"s_sub_u32 s{sNt}, s3, s{sT0}")
    k(f"s_mul_i32 s{sS0}, s{sW}, 40")
    k(f"s_min_u32 s{sT0}, s{sW}, 2")
    k(f"s_add_u32 s{sS0}, s{sS0}, s{sT0}")
    k(f"s_cmp_lt_u32 s{sW}, 2")
    k(f"s_cselect_b32 s{sNY}, 41, 40")
    k(f"s_cmp_eq_u32 s{sW}, 3")
    k(f"s_cselect_b32 s{sNY}, 22, s{sNY}")
    k(f"s_cselect_b32 s{sNS}, 18, 0")
    k("v_lshrrev_b32 v13, 3, v0")
    k("v_bfe_u32 v14, v0, 1, 2")
    k("v_bfe_u32 v15, v0, 4, 2")
    k("v_xor_b32 v14, v14, v15")
    k("v_lshlrev_b32 v14, 5, v14")
    k("v_and_b32 v15, 1, v0")
    k("v_lshl_add_u32 v14, v15, 4, v14")
    k("v_mul_u32_u24 v13, 1152, v13")
    k("v_add_u32 v13, v13, v14")
    k(f"s_lshl_b32 s{sT0}, s{sNt}, 7")
    k(f"v_add_u32 v{vDma}, s{sT0}, v13")
    k("v_lshrrev_b32 v13, 5, v0")
    k("v_lshlrev_b32 v13, 4, v13")
    k("v_bfe_u32 v14, v0, 4, 1")
    k("v_lshl_add_u32 v13, v14, 2, v13")
    k("v_bfe_u32 v14, v0, 2, 2")
    k("v_add_u32 v13, v13, v14")
    k("v_bfe_u32 v14, v13, 1, 2")
    k("v_lshlrev_b32 v13, 7, v13")
    k("v_and_b32 v15, 3, v0")
    k("v_lshl_add_u32 v13, v15, 3, v13")
    k(f"s_mul_i32 s{sM0b}, s{sW}, {K3_R*4096}")
    k(f"v_add_u32 v13, s{sM0b}, v13")
    for ct in range(4):
        k(f"v_xor_b32 v15, {ct}, v14")
        k(f"v_lshl_add_u32 v{vRd+ct}, v15, 5, v13")
    k(f"v_lshlrev_b32 v{vH}, 4, v0")
    k("s_waitcnt lgkmcnt(0)")
    srd(k, 16, 12, 13, HO_SIZE, HO_OFF)
    srd(k, 20, 8, 9, F * D * 2)
    srd(k, 24, 6, 7, D * D * 2)
    srd(k, 44, 4, 5, XN_SIZE)
    srd(k, 48, 10, 11, XN_SIZE)
    srd(k, 52, 8, 9, F * D * 2)
    stamp_init(k, 12, 13, sW)
    stamp(k, 250)
    for i in range(5):
        k(f"s_mul_i32 s{sT0}, s{sRb}, 5")
        k(f"s_add_u32 s{sT0}, s{sT0}, {i}")
        k(f"s_lshr_b32 s{sT1}, s{sT0}, 2")
        k(f"s_mul_i32 s{sT1}, s{sT1}, 162")
        k(f"s_add_u32 s{sT1}, s{sT1}, s{sS0}")
        k(f"s_lshl_b32 s{sT1}, s{sT1}, 12")
        k(f"s_and_b32 s{sT0}, s{sT0}, 3")
        k(f"s_lshl_b32 s{sT0}, s{sT0}, 10")
        k(f"s_add_u32 s{sH+i}, s{sT1}, s{sT0}")
    k(f"s_mul_i32 s{sWoff}, s{sS0}, {32*1152}")
    k(f"s_mov_b32 s{sLd}, s{sS0}")
    k(f"s_add_u32 s{sLim}, s{sS0}, s{sNY}")
    k(f"s_add_u32 s{sLim}, s{sLim}, s{sNS}")

    def issue_list(st):
        g = []
        pre = [f"s_cmp_eq_u32 s{sLd}, 144",
               "s_cselect_b32 s52, s24, s52",
               "s_cselect_b32 s53, s25, s53",
               "s_cselect_b32 s54, s26, s54",
               f"s_cselect_b32 s{sWoff}, 0, s{sWoff}",
               f"s_cmp_lt_u32 s{sLd}, s{sLim}",
               "s_cselect_b32 s54, s54, 0",
               "s_cselect_b32 s18, s18, 0",
               f"s_add_u32 s{sLd}, s{sLd}, 1"]
        for i in range(4):
            o = list(pre) if i == 0 else []
            o += [f"s_add_u32 s{sT0}, s{sM0b}, {st*4096 + i*1024}",
                  f"s_mov_b32 m0, s{sT0}",
                  f"s_add_u32 s{sT1}, s{sWoff}, {i*8*1152}",
                  f"buffer_load_dwordx4 v{vDma}, s[52:55], s{sT1} offen lds"]
            g.append(o)
        for j in range(5):
            r = 20 * st + 4 * j
            o = [f"buffer_load_dwordx4 a[{r}:{r+3}], v{vH}, s[16:19], s{sH+j} offen",
                 f"s_add_u32 s{sH+j}, s{sH+j}, 4096"]
            if j == 4:
                o.append(f"s_add_u32 s{sWoff}, s{sWoff}, {32*1152}")
            g.append(o)
        return g

    def tr_reads(st, par):
        for ct in range(4):
            r = WFR + 16 * par + 4 * ct
            for part in range(2):
                k(f"ds_read_b64_tr_b16 v[{r+2*part}:{r+2*part+1}], v{vRd+ct} offset:{st*4096 + part*1024}")

    for st in range(K3_PF):
        for g in issue_list(st):
            for i in g:
                k(i)
    for r in range(ACCY, ACCY + 160):
        k(f"v_mov_b32 v{r}, 0")
    k(f"s_waitcnt vmcnt({9*(K3_PF-1)})")
    tr_reads(0, 0)

    def step_body(st, acc):
        par = st & 1
        k(f"s_waitcnt vmcnt({9*(K3_PF-2)})")
        tr_reads((st + 1) % K3_R, par ^ 1)
        groups = issue_list((st + K3_PF) % K3_R)
        n = 0
        for ct in range(4):
            k(f"s_waitcnt lgkmcnt({8 + 6 - 2*ct})")
            r = WFR + 16 * par + 4 * ct
            for mt in range(5):
                a = acc + 4 * (mt * 4 + ct)
                h = 20 * st + 4 * mt
                k(f"v_mfma_f32_16x16x32_bf16 v[{a}:{a+3}], v[{r}:{r+3}], a[{h}:{h+3}], v[{a}:{a+3}]")
                if n % 2 == 1 and groups:
                    for i in groups.pop(0):
                        k(i)
                n += 1
        assert not groups

    def emit_loop(tag, acc, cnt, exits):
        for st in range(K3_R):
            k.label(f"L_k3_{tag}{st}")
            k(f"s_cmp_eq_u32 s{cnt}, 0")
            k(f"s_cbranch_scc1 {exits[st]}")
            k(f"s_sub_u32 s{cnt}, s{cnt}, 1")
            if st == 0:
                stamp(k, 250)
            step_body(st, acc)
        k(f"s_branch L_k3_{tag}0")

    emit_loop("y", ACCY, sNY, [f"L_k3_s{st}" for st in range(K3_R)])
    emit_loop("s", ACCS, sNS, ["L_k3_red"] * K3_R)
    k.label("L_k3_red")
    stamp(k, 250)
    k("s_waitcnt vmcnt(0) lgkmcnt(0)")
    k("s_barrier")
    k(f"v_lshlrev_b32 v{TMP}, 4, v0")
    k(f"s_mul_i32 s{sT0}, s{sW}, {20*1024}")
    k(f"v_add_u32 v{TMP+1}, s{sT0}, v{TMP}")
    k("s_nop 7")
    for f in range(20):
        a = ACCY + 4 * f
        k(f"ds_write_b128 v{TMP+1}, v[{a}:{a+3}] offset:{f*1024}")
    k(f"s_cmp_eq_u32 s{sW}, 3")
    k("s_cbranch_scc0 L_k3_nos")
    k(f"v_add_u32 v{TMP+2}, {80*1024}, v{TMP}")
    for f in range(20):
        a = ACCS + 4 * f
        k(f"ds_write_b128 v{TMP+2}, v[{a}:{a+3}] offset:{f*1024}")
    k.label("L_k3_nos")
    k(f"s_mul_i32 s{sT0}, s{sRb}, 80")
    k("v_and_b32 v13, 15, v0")
    k(f"v_add_u32 v13, s{sT0}, v13")
    k("v_mul_u32_u24 v13, 1152, v13")
    k("v_lshrrev_b32 v14, 4, v0")
    k("v_lshl_add_u32 v13, v14, 3, v13")
    k(f"s_lshl_b32 s{sT0}, s{sNt}, 7")
    k(f"s_lshl_b32 s{sT1}, s{sW}, 5")
    k(f"s_add_u32 s{sT0}, s{sT0}, s{sT1}")
    k(f"v_add_u32 v{vX}, s{sT0}, v13")
    XR = TMP + 4
    for mt in range(5):
        k(f"s_mov_b32 s{sH+mt}, {mt*16*1152}")
        k(f"buffer_load_dwordx2 v[{XR+2*mt}:{XR+2*mt+1}], v{vX}, s[44:47], s{sH+mt} offen")
    k("s_waitcnt lgkmcnt(0)")
    k("s_barrier")
    k(f"s_lshl_b32 s{sT0}, s{sW}, 10")
    k(f"v_add_u32 v{TMP+1}, s{sT0}, v{TMP}")
    k(f"v_add_u32 v{TMP+3}, {40*1024}, v{TMP+1}")
    for src in range(4):
        for mt in range(5):
            a = ACCY + 4 * (src * 5 + mt)
            b = TMP + 1 if src < 2 else TMP + 3
            k(f"ds_read_b128 v[{a}:{a+3}], v{b} offset:{(src%2)*20*1024 + mt*4096}")
    k(f"v_add_u32 v{TMP+2}, {80*1024}, v{TMP+1}")
    for mt in range(5):
        a = ACCS + 4 * mt
        k(f"ds_read_b128 v[{a}:{a+3}], v{TMP+2} offset:{mt*4096}")
    k("s_waitcnt lgkmcnt(0)")
    for mt in range(5):
        for r in range(4):
            a = ACCY + 4 * mt + r
            k(f"v_add_f32 v{a}, v{a}, v{a+20}")
            k(f"v_add_f32 v{a+40}, v{a+40}, v{a+60}")
            k(f"v_add_f32 v{a}, v{a}, v{a+40}")
    k("s_waitcnt vmcnt(0)")
    L2E = f2u(-1.4426950408889634)
    for mt in range(5):
        for pr in range(2):
            y0 = ACCY + 4 * mt + 2 * pr
            s0 = ACCS + 4 * mt + 2 * pr
            t = 176 + 8 * pr
            k(f"v_cvt_pk_bf16_f32 v{t}, v{y0}, v{y0+1}")
            k(f"v_cvt_pk_bf16_f32 v{t+1}, v{s0}, v{s0+1}")
            k(f"v_lshlrev_b32 v{t+2}, 16, v{t}")
            k(f"v_and_b32 v{t+3}, 0xffff0000, v{t}")
            k(f"v_mul_f32 v{t+4}, {hx(L2E)}, v{t+2}")
            k(f"v_mul_f32 v{t+5}, {hx(L2E)}, v{t+3}")
            k(f"v_exp_f32 v{t+4}, v{t+4}")
            k(f"v_exp_f32 v{t+5}, v{t+5}")
            k(f"v_lshlrev_b32 v{t+6}, 16, v{t+1}")
            k(f"v_add_f32 v{t+4}, 1.0, v{t+4}")
            k(f"v_add_f32 v{t+5}, 1.0, v{t+5}")
            k(f"v_rcp_f32 v{t+4}, v{t+4}")
            k(f"v_rcp_f32 v{t+5}, v{t+5}")
            k(f"v_and_b32 v{t+7}, 0xffff0000, v{t+1}")
            k(f"v_mul_f32 v{t+4}, v{t+4}, v{t+2}")
            k(f"v_mul_f32 v{t+5}, v{t+5}, v{t+3}")
            k(f"v_cvt_pk_bf16_f32 v{t}, v{t+4}, v{t+5}")
            k(f"v_lshlrev_b32 v{t+4}, 16, v{t}")
            k(f"v_and_b32 v{t+5}, 0xffff0000, v{t}")
            k(f"v_mul_f32 v{t+4}, v{t+4}, v{t+6}")
            k(f"v_mul_f32 v{t+5}, v{t+5}, v{t+7}")
            k(f"v_cvt_pk_bf16_f32 v{t}, v{t+4}, v{t+5}")
            k(f"v_lshlrev_b32 v{t+4}, 16, v{t}")
            k(f"v_and_b32 v{t+5}, 0xffff0000, v{t}")
            xr = XR + 2 * mt + pr
            k(f"v_lshlrev_b32 v{t+6}, 16, v{xr}")
            k(f"v_and_b32 v{t+7}, 0xffff0000, v{xr}")
            k(f"v_add_f32 v{t+4}, v{t+4}, v{t+6}")
            k(f"v_add_f32 v{t+5}, v{t+5}, v{t+7}")
            k(f"v_cvt_pk_bf16_f32 v{xr}, v{t+4}, v{t+5}")
        k(f"buffer_store_dwordx2 v[{XR+2*mt}:{XR+2*mt+1}], v{vX}, s[48:51], s{sH+mt} offen")
    stamp(k, 250)
    stamp_rt(k, 250)
    k.label("L_k3_done")
    k("s_endpgm")
    return k.text()


def main():
    ref = open(f"cdna_kernels/{NAME}.s.ref").read().splitlines()
    head = []
    for line in ref:
        if line.startswith("; @launch") or line.startswith("; Override") or line.startswith("; grid="):
            continue
        if not line.startswith(";"):
            break
        head.append(line)
    out = "\n".join(head) + "\n"
    out += "; @launch kernel=k0_ln_kernel grid=(256,1,1) block=(256,1,1) lds=0\n"
    out += f"; @launch kernel=k1_gemm1_kernel grid=(256,1,1) block=(256,1,1) lds={K1_LDS}\n"
    out += "; @launch kernel=k2_attn_kernel grid=(256,1,1) block=(256,1,1) lds=0\n"
    out += f"; @launch kernel=k3_gemm2_kernel grid=({K3_GRID},1,1) block=(256,1,1) lds={K3_LDS}\n"
    out += '.amdgcn_target "amdgcn-amd-amdhsa--gfx950"\n.text\n'
    out += kernel_header("k0_ln_kernel") + gen_k0()
    out += kernel_header("k1_gemm1_kernel") + gen_k1()
    out += kernel_header("k2_attn_kernel") + gen_k2()
    out += kernel_header("k3_gemm2_kernel") + gen_k3()
    out += '.section .rodata,"a"\n.p2align 6\n'
    out += kernel_desc("k0_ln_kernel", 148, 148)
    out += ".p2align 6\n" + kernel_desc("k1_gemm1_kernel", 512, 256)
    out += ".p2align 6\n" + kernel_desc("k2_attn_kernel", 256, 256)
    out += ".p2align 6\n" + kernel_desc("k3_gemm2_kernel", 512, 256)
    path = sys.argv[1] if len(sys.argv) > 1 and not sys.argv[1].startswith("--") else f"cdna_kernels/{NAME}.s"
    open(path, "w").write(out)
    print("wrote", path, len(out), "bytes")


if __name__ == "__main__":
    main()
```

```python
import struct, sys

NAME = "recurrent_scan__sliding_local_dilated__geglu_ffn__prompt"
S, D, F = 2048, 576, 4608
XN_OFF = 0
XN_SIZE = S * D * 2
QKV_OFF = XN_OFF + XN_SIZE
QKV_SIZE = S * 1728 * 2
HO_OFF = QKV_OFF + QKV_SIZE
HO_SIZE = 32 * 162 * 4096
FLAG_OFF = 31 << 20
FLAG_SIZE = 8192

STAMP = False
STAMPK = [a for a in sys.argv if a.startswith("--stamp")]
STAMP_OFF = 48 << 20
SC = " sc1" if "--sc1" in sys.argv else ""
if "--nt" in sys.argv:
    SC = " nt"
if "--sc01" in sys.argv:
    SC = " sc0 sc1"
HSC = "" if "--hplain" in sys.argv else " sc1"
MIMIC = "--nomimic" not in sys.argv


def f2u(x):
    return struct.unpack("<I", struct.pack("<f", x))[0]


def hx(x):
    return "0x%08x" % (x & 0xFFFFFFFF)


class K:
    def __init__(self):
        self.l = []

    def __call__(self, s):
        self.l.append(s if s.endswith(":") else "    " + s)

    def label(self, s):
        self.l.append(s + ":")

    def c(self, s):
        self.l.append("    ; " + s)

    def text(self):
        return "\n".join(self.l) + "\n"


def srd(k, base, lo, hi, size, add=0):
    if add:
        k(f"s_add_u32 s{base}, s{lo}, {hx(add)}")
        k(f"s_addc_u32 s{base+1}, s{hi}, 0")
    else:
        k(f"s_mov_b32 s{base}, s{lo}")
        k(f"s_mov_b32 s{base+1}, s{hi}")
    k(f"s_and_b32 s{base+1}, s{base+1}, 0xffff")
    k(f"s_mov_b32 s{base+2}, {hx(size)}")
    k(f"s_mov_b32 s{base+3}, 0x00020000")


def stamp_init(k, wslo, wshi, wavereg):
    if not STAMP:
        return
    srd(k, 92, wslo, wshi, 1 << 20, STAMP_OFF)
    k(f"s_lshl_b32 s97, s2, 2")
    k(f"s_add_u32 s97, s97, s{wavereg}")
    k(f"s_lshl_b32 s97, s97, 8")
    k(f"s_mov_b32 s96, 0")
    k(f"s_movk_i32 s100, 248")
    stamp_rt(k, 250)


def stamp(k, vt):
    if not STAMP:
        return
    k("s_memrealtime s[98:99]" if "--rt" in sys.argv else "s_memtime s[98:99]")
    k("s_waitcnt lgkmcnt(0)")
    k(f"v_mov_b32 v{vt}, s98")
    k(f"v_mov_b32 v{vt+1}, s97")
    k(f"buffer_store_dword v{vt}, v{vt+1}, s[92:95], s96 offen")
    k("s_add_u32 s96, s96, 4")


def stamp_rt(k, vt):
    if not STAMP:
        return
    k("s_memrealtime s[98:99]")
    k("s_waitcnt lgkmcnt(0)")
    k(f"v_mov_b32 v{vt}, s98")
    k(f"v_mov_b32 v{vt+1}, s97")
    k(f"buffer_store_dword v{vt}, v{vt+1}, s[92:95], s100 offen")
    k("s_add_u32 s100, s100, 4")


def code_prefetch(k, label, nkb, sW, vLin, sA):
    if "--nocpf" in sys.argv:
        return
    k(f"s_getpc_b64 s[{sA}:{sA+1}]")
    k(f"L_pc_{label}:")
    k(f"s_sub_u32 s{sA}, s{sA}, L_pc_{label}-{label}")
    k(f"s_subb_u32 s{sA+1}, s{sA+1}, 0")
    k(f"s_and_b32 s{sA+1}, s{sA+1}, 0xffff")
    k(f"s_mov_b32 s{sA+2}, {nkb*1024}")
    k(f"s_mov_b32 s{sA+3}, 0x00020000")
    k(f"s_lshr_b32 s{sA+4}, s2, 3")
    k(f"s_lshl_b32 s{sA+4}, s{sA+4}, 2")
    k(f"s_add_u32 s{sA+4}, s{sA+4}, s{sW}")
    k(f"s_lshl_b32 s{sA+4}, s{sA+4}, 10")
    k(f"buffer_load_dwordx4 v[236:239], v{vLin}, s[{sA}:{sA+3}], s{sA+4} offen")


def kernel_header(name):
    return (f".globl {name}\n.p2align 8\n.type {name},@function\n{name}:\n")


def kernel_desc(name, vgpr, accum, sgpr=102):
    return f""".amdhsa_kernel {name}
  .amdhsa_next_free_vgpr {vgpr}
  .amdhsa_next_free_sgpr {sgpr}
  .amdhsa_accum_offset {accum}
  .amdhsa_group_segment_fixed_size 0
  .amdhsa_kernarg_size 80
  .amdhsa_user_sgpr_count 2
  .amdhsa_user_sgpr_kernarg_segment_ptr 1
  .amdhsa_system_sgpr_workgroup_id_x 1
.end_amdhsa_kernel
"""


def gen_k0():
    k = K()
    k("s_cmp_ge_u32 s2, 256")
    k("s_cbranch_scc1 L_k0_done")
    k("s_load_dwordx2 s[4:5], s[0:1], 0")
    k("s_load_dwordx2 s[6:7], s[0:1], 72")
    k("s_load_dwordx2 s[32:33], s[0:1], 8")
    k("s_load_dwordx4 s[36:39], s[0:1], 32")
    k("v_lshrrev_b32 v1, 6, v0")
    k("s_nop 0")
    k("v_readfirstlane_b32 s30, v1")
    k("v_lshrrev_b32 v3, 5, v0")
    k("v_and_b32 v2, 31, v0")
    k("v_and_b32 v0, 63, v0")
    k("v_lshlrev_b32 v7, 4, v0")
    k("s_lshl_b32 s3, s2, 3")
    k("v_add_u32 v3, s3, v3")
    k("v_mul_u32_u24 v4, 1152, v3")
    k("v_lshl_add_u32 v4, v2, 4, v4")
    k("v_lshrrev_b32 v5, 5, v3")
    k("v_mul_u32_u24 v5, 36864, v5")
    k("v_lshrrev_b32 v6, 1, v2")
    k("v_lshl_add_u32 v5, v6, 10, v5")
    k("v_and_b32 v6, 1, v2")
    k("v_lshl_add_u32 v5, v6, 9, v5")
    k("v_and_b32 v6, 31, v3")
    k("v_lshl_add_u32 v5, v6, 4, v5")
    k("v_cmp_gt_u32 s[60:61], 8, v2")
    k("s_waitcnt lgkmcnt(0)")
    srd(k, 8, 4, 5, XN_SIZE)
    srd(k, 12, 6, 7, XN_SIZE, XN_OFF)
    for r in range(24, 28):
        k(f"v_mov_b32 v{r}, 0")
    k("buffer_load_dwordx4 v[16:19], v4, s[8:11], 0 offen")
    k("buffer_load_dwordx4 v[20:23], v4, s[8:11], 0 offen offset:512")
    k("s_mov_b64 exec, s[60:61]")
    k("buffer_load_dwordx4 v[24:27], v4, s[8:11], 0 offen offset:1024")
    k("s_mov_b64 exec, -1")
    npf = 0
    if "--nopf0" not in sys.argv:
        srd(k, 40, 32, 33, 576 * 3456)
        srd(k, 44, 36, 37, 576 * 9216)
        srd(k, 48, 38, 39, 576 * 9216)
        k("s_lshl_b32 s31, s2, 2")
        k("s_add_u32 s31, s31, s30")
        k("s_lshl_b32 s34, s31, 11")
        k("s_mul_i32 s35, s31, 6144")
        k("s_add_u32 s52, s35, 4096")
        for i in range(2):
            k(f"buffer_load_dwordx4 v[80:83], v7, s[40:43], s34 offen offset:{1024*i}")
        for i in range(6):
            so = 35 if i < 4 else 52
            k(f"buffer_load_dwordx4 v[80:83], v7, s[44:47], s{so} offen offset:{1024*(i%4)}")
            k(f"buffer_load_dwordx4 v[84:87], v7, s[48:51], s{so} offen offset:{1024*(i%4)}")
        npf = 14
    srd(k, 56, 6, 7, FLAG_SIZE, FLAG_OFF)
    k("s_lshl_b32 s34, s2, 2")
    k("s_add_u32 s34, s34, s30")
    k("s_lshl_b32 s34, s34, 2")
    k("v_mov_b32 v8, 0")
    k("s_mov_b64 exec, 1")
    k("buffer_store_dword v8, v8, s[56:59], s34 offen")
    k("s_mov_b64 exec, -1")
    npf += 1
    k("v_mov_b32 v9, 0")
    k(f"s_waitcnt vmcnt({npf})")
    for j in range(12):
        r = 16 + j
        o = 32 + 2 * j
        k(f"v_lshlrev_b32 v{o}, 16, v{r}")
        k(f"v_and_b32 v{o+1}, 0xffff0000, v{r}")
        k(f"v_add_f32 v8, v8, v{o}")
        k(f"v_add_f32 v9, v9, v{o+1}")
    k("v_add_f32 v8, v8, v9")

    def red32(r):
        for mode in ("quad_perm:[1,0,3,2]", "quad_perm:[2,3,0,1]", "row_half_mirror", "row_mirror"):
            k("s_nop 1")
            k(f"v_add_f32_dpp v{r}, v{r}, v{r} {mode} row_mask:0xf bank_mask:0xf")
        k("s_nop 0")
        k(f"ds_swizzle_b32 v14, v{r} offset:0x401F")
        k("s_waitcnt lgkmcnt(0)")
        k(f"v_add_f32 v{r}, v{r}, v14")
    red32(8)
    k(f"v_mul_f32 v8, {hx(f2u(1.0/576.0))}, v8")
    k("v_mov_b32 v10, 0")
    k("v_mov_b32 v11, 0")
    for e in range(0, 24, 2):
        k(f"v_sub_f32 v12, v{32+e}, v8")
        k(f"v_sub_f32 v13, v{33+e}, v8")
        if e == 16:
            k("s_mov_b64 exec, s[60:61]")
        k("v_fmac_f32 v10, v12, v12")
        k("v_fmac_f32 v11, v13, v13")
    k("s_mov_b64 exec, -1")
    k("v_add_f32 v10, v10, v11")
    red32(10)
    k(f"v_mul_f32 v10, {hx(f2u(1.0/576.0))}, v10")
    k("v_cvt_pk_bf16_f32 v8, v8, v10")
    k("v_and_b32 v10, 0xffff0000, v8")
    k("v_lshlrev_b32 v8, 16, v8")
    k(f"v_add_f32 v10, {hx(f2u(1e-5))}, v10")
    k("v_cvt_pk_bf16_f32 v10, v10, v10")
    k("v_lshlrev_b32 v10, 16, v10")
    k("v_sqrt_f32 v10, v10")
    k("s_nop 0")
    k("v_cvt_pk_bf16_f32 v10, v10, v10")
    k("v_lshlrev_b32 v10, 16, v10")
    k("v_rcp_f32 v10, v10")
    k("s_nop 0")
    k("s_movk_i32 s20, 16384")
    k("s_mov_b32 s21, 32768")
    for i in range(3):
        for j in range(4):
            o = 32 + 8 * i + 2 * j
            r = 16 + 4 * i + j
            k(f"v_sub_f32 v12, v{o}, v8")
            k(f"v_sub_f32 v13, v{o+1}, v8")
            k("v_cvt_pk_bf16_f32 v12, v12, v13")
            k("v_and_b32 v13, 0xffff0000, v12")
            k("v_lshlrev_b32 v12, 16, v12")
            k("v_mul_f32 v12, v12, v10")
            k("v_mul_f32 v13, v13, v10")
            k(f"v_cvt_pk_bf16_f32 v{r}, v12, v13")
        if i == 2:
            k("s_mov_b64 exec, s[60:61]")
        so = ["0", "s20", "s21"][i]
        k(f"buffer_store_dwordx4 v[{16+4*i}:{19+4*i}], v5, s[12:15], {so} offen")
    k.label("L_k0_done")
    k("s_endpgm")
    return k.text()


KVB = 98304
OST = KVB + 53248
uid2 = [0]


class Inject:
    def __init__(self, k, groups, every):
        self.k, self.groups, self.every, self.n, self.done = k, list(groups), every, 0, 0

    def __call__(self, s):
        self.k(s)
        self.n += 1
        if self.groups and self.n % self.every == 0 and not s.startswith("s_nop") and not s.startswith("v_cmp"):
            for i in self.groups.pop(0):
                self.k(i)
            self.done += 1

    def flush(self):
        while self.groups:
            for i in self.groups.pop(0):
                self.k(i)
            self.done += 1

    def label(self, s):
        self.k.label(s)


def gen_k2(k=None, groups=None):
    fused = True
    tid = "v255"
    k("s_load_dwordx2 s[6:7], s[0:1], 72")
    k(f"v_and_b32 v1, 31, {tid}")
    k(f"v_lshrrev_b32 v2, 5, {tid}")
    k("s_lshl_b32 s3, s2, 3")
    k("v_mul_u32_u24 v3, 36, v1")
    k("v_mul_u32_u24 v4, 2304, v2")
    k("v_add_u32 v4, v4, v3")
    k(f"v_add_u32 v4, {KVB}, v4")
    k("v_add_u32 v2, s3, v2")
    k(f"v_lshrrev_b32 v5, 6, {tid}")
    k("s_nop 0")
    k("v_readfirstlane_b32 s86, v5")
    k(f"v_and_b32 v6, 63, {tid}")
    k("s_waitcnt lgkmcnt(0)")
    srd(k, 8, 6, 7, QKV_SIZE, QKV_OFF)
    srd(k, 12, 6, 7, HO_SIZE, HO_OFF)
    QB, KB, VB = 16, 32, 112
    k("s_movk_i32 s80, 3456")
    k("v_mad_u32_u24 v7, v2, s80, v3")
    k(f"buffer_load_dwordx4 v[{QB}:{QB+3}], v7, s[8:11], 0 offen")
    k(f"buffer_load_dwordx4 v[{QB+4}:{QB+7}], v7, s[8:11], 0 offen offset:16")
    k(f"buffer_load_dword v{QB+8}, v7, s[8:11], 0 offen offset:32")
    k("s_movk_i32 s84, 1152")
    k(f"s_mov_b32 s81, {(1 << 32) // 144 + 1}")
    k("s_sub_u32 s82, s3, 14")
    k("s_lshl_b32 s87, s86, 6")
    k("v_add_u32 v8, s87, v6")
    k("s_lshl_b32 s87, s86, 10")
    k(f"s_add_u32 s87, s87, {KVB}")
    for n in range(13):
        k("v_mul_hi_u32 v9, v8, s81")
        k("v_mul_u32_u24 v10, 144, v9")
        k("v_sub_u32 v10, v8, v10")
        k("v_add_u32 v9, s82, v9")
        k("v_max_i32 v9, 0, v9")
        k("v_min_i32 v9, 2047, v9")
        k("v_lshlrev_b32 v10, 4, v10")
        k("v_mad_u32_u24 v9, v9, s80, v10")
        k("s_mov_b32 m0, s87")
        k("s_add_u32 s87, s87, 4096")
        k("buffer_load_dwordx4 v9, s[8:11], s85 offen lds") if False else k("buffer_load_dwordx4 v9, s[8:11], s84 offen lds")
        k("v_add_u32 v8, 256, v8")
    k0_ = k
    k = Inject(k0_, groups or [], 8)
    k("v_and_b32 v12, 7, v2")
    k("v_lshlrev_b32 v12, 4, v12")
    k(f"v_add_u32 v12, {OST}, v12")
    k("v_mul_u32_u24 v14, 18, v1")
    for t in range(9):
        o = 200 + t
        k(f"v_add_u32 v13, {2*t}, v14")
        k(f"v_lshrrev_b32 v15, 4, v13")
        k(f"v_lshl_add_u32 v{o}, v15, 8, v12")
        k(f"v_bfe_u32 v15, v13, 2, 1")
        k(f"v_lshl_add_u32 v{o}, v15, 7, v{o}")
        k(f"v_bfe_u32 v15, v13, 3, 1")
        k(f"v_lshl_add_u32 v{o}, v15, 3, v{o}")
        k(f"v_and_b32 v15, 3, v13")
        k(f"v_lshl_add_u32 v{o}, v15, 1, v{o}")
    SC = f2u(18 ** -0.5)
    k(f"s_waitcnt vmcnt({k.done})")
    k("s_barrier")

    def kv_reads(j, base, coloff):
        off = (14 - 2 * j) * 2304 + coloff
        k(f"v_add_u32 v12, {off}, v4")
        for t in range(0, 8, 2):
            k(f"ds_read2_b32 v[{base+t}:{base+t+1}], v12 offset0:{t} offset1:{t+1}")
        k(f"ds_read_b32 v{base+8}, v12 offset:32")
    for j in range(8):
        kv_reads(j, KB + 10 * j, 0)
    for j in range(8):
        k(f"s_waitcnt lgkmcnt({min(15, 5*(7-j))})")
        b = KB + 10 * j
        L = 210 + j
        k(f"v_dot2_f32_bf16 v{L}, v{QB}, v{b}, 0")
        for t in range(1, 9):
            k(f"v_dot2_f32_bf16 v{L}, v{QB+t}, v{b+t}, v{L}")
    for j in range(8):
        kv_reads(j, VB + 10 * j, 1152)
    k("s_nop 3")
    for j in range(0, 8, 2):
        L = 210 + j
        k(f"v_cvt_pk_bf16_f32 v12, v{L}, v{L+1}")
        k(f"v_lshlrev_b32 v{L}, 16, v12")
        k(f"v_and_b32 v{L+1}, 0xffff0000, v12")
        k(f"v_mul_f32 v{L}, {hx(SC)}, v{L}")
        k(f"v_mul_f32 v{L+1}, {hx(SC)}, v{L+1}")
        k(f"v_cvt_pk_bf16_f32 v12, v{L}, v{L+1}")
        k(f"v_lshlrev_b32 v{L}, 16, v12")
        k(f"v_and_b32 v{L+1}, 0xffff0000, v12")
    k(f"v_mov_b32 v13, {hx(f2u(-1e9))}")
    for j in range(1, 8):
        k(f"v_cmp_le_u32 vcc, {2*j}, v2")
        k("s_nop 1")
        k(f"v_cndmask_b32 v{210+j}, v13, v{210+j}, vcc")
    k("v_max3_f32 v12, v210, v211, v212")
    k("v_max3_f32 v12, v12, v213, v214")
    k("v_max3_f32 v12, v12, v215, v216")
    k("v_max_f32 v12, v12, v217")
    LOG2E = f2u(1.4426950408889634)
    for j in range(8):
        k(f"v_sub_f32 v{210+j}, v{210+j}, v12")
        k(f"v_mul_f32 v{210+j}, {hx(LOG2E)}, v{210+j}")
        k(f"v_exp_f32 v{210+j}, v{210+j}")
    k("s_nop 0")
    k("v_add_f32 v12, v210, v211")
    k("v_add_f32 v13, v212, v213")
    k("v_add_f32 v14, v214, v215")
    k("v_add_f32 v15, v216, v217")
    k("v_add_f32 v12, v12, v13")
    k("v_add_f32 v14, v14, v15")
    k("v_add_f32 v12, v12, v14")
    k("v_rcp_f32 v12, v12")
    k("s_nop 0")
    for j in range(8):
        k(f"v_mul_f32 v{210+j}, v{210+j}, v12")
    for j in range(0, 8, 2):
        k(f"v_cvt_pk_bf16_f32 v{220+j//2}, v{210+j}, v{211+j}")
    k("s_mov_b32 s81, 0x05040100")
    k("s_mov_b32 s82, 0x07060302")
    k("s_waitcnt lgkmcnt(0)")
    for t in range(9):
        for jp in range(4):
            a = VB + 10 * (2 * jp) + t
            b = VB + 10 * (2 * jp + 1) + t
            k(f"v_perm_b32 v12, v{b}, v{a}, s81")
            k(f"v_perm_b32 v13, v{b}, v{a}, s82")
            c0 = "0" if jp == 0 else f"v{224+2*t}"
            c1 = "0" if jp == 0 else f"v{225+2*t}"
            k(f"v_dot2_f32_bf16 v{224+2*t}, v12, v{220+jp}, {c0}")
            k(f"v_dot2_f32_bf16 v{225+2*t}, v13, v{220+jp}, {c1}")
    k("s_nop 3")
    for t in range(9):
        k(f"v_cvt_pk_bf16_f32 v{224+2*t}, v{224+2*t}, v{225+2*t}")
        k(f"ds_write_b32 v{200+t}, v{224+2*t}")
    k("s_lshr_b32 s84, s2, 3")
    k("s_mul_i32 s84, s84, 162")
    k("s_add_u32 s84, s84, 144")
    k("s_lshl_b32 s84, s84, 12")
    k("s_bfe_u32 s85, s2, 0x20001")
    k("s_lshl_b32 s85, s85, 10")
    k("s_add_u32 s84, s84, s85")
    k("s_and_b32 s85, s2, 1")
    k("s_lshl_b32 s85, s85, 7")
    k("s_add_u32 s84, s84, s85")
    for i in range(3):
        k(f"v_add_u32 v12, {256*i}, {tid}")
        k(f"v_lshlrev_b32 v{200+i}, 4, v12")
        k(f"v_add_u32 v{200+i}, {OST}, v{200+i}")
        k("v_lshrrev_b32 v13, 5, v12")
        k(f"v_lshlrev_b32 v{204+i}, 12, v13")
        k("v_bfe_u32 v13, v12, 3, 2")
        k(f"v_lshl_add_u32 v{204+i}, v13, 8, v{204+i}")
        k("v_and_b32 v13, 7, v12")
        k(f"v_lshl_add_u32 v{204+i}, v13, 4, v{204+i}")
    k.flush()
    k = k0_
    k("s_waitcnt lgkmcnt(0)")
    k("s_barrier")
    for i in range(3):
        k(f"ds_read_b128 v[{224+4*i}:{227+4*i}], v{200+i}")
    k(f"v_cmp_gt_u32 vcc, 64, {tid}")
    k("s_waitcnt lgkmcnt(0)")
    for i in range(3):
        if i == 2:
            k("s_and_saveexec_b64 s[86:87], vcc")
            k(f"s_cbranch_execz L_k2_skip{uid2[0]}")
        k(f"buffer_store_dwordx4 v[{224+4*i}:{227+4*i}], v{204+i}, s[12:15], s84 offen" + (" sc1" if fused else ""))
    k(f"L_k2_skip{uid2[0]}:")
    uid2[0] += 1
    k("s_mov_b64 exec, -1")


SLOT = 36864
K1_KB = 26
K3_KB = 21
K1_LDS = 4 * SLOT
K1_LDS_ALLOC = 4 * SLOT + 16384


def gen_k1():
    global STAMP
    STAMP = "--stamp1" in sys.argv
    k = K()
    sW, sNq, sNblk, sD, sQoff, sPoff, sIsUp = 28, 29, 30, 31, 32, 33, 34
    sSoff, sStep, sM0, sSlotRd, sSlotDma, sHoOff, sQkvOff = 35, 36, 37, 38, 39, 40, 41
    sCnt, sNp, sT0, sT1, sStepQ, sStepG, sSzQ, sSzG, sWbase = 42, 43, 44, 45, 46, 47, 48, 49, 50
    sXLo, sXHi, sNp2, sXn, sJq, sJg, sQkvOff2 = 51, 52, 53, 54, 55, 56, 57
    vLaneRd, vRdCur, vRdNext, vOffQ, vOffG, vOffD, vHoOff, vQkvOff, vC0, vC1, vXnOff = range(1, 12)
    TMP = 16
    QT = 48
    ACC = [64, 128]
    XNV = 192
    WF = 224
    JF = 16
    vQkvOff2, vQr, vQw = 244, 245, 246

    def xn_reg(rt, ks):
        idx = rt * 36 + ks
        if idx < 64:
            return f"a[{4*idx}:{4*idx+3}]"
        r = XNV + 4 * (idx - 64)
        return f"v[{r}:{r+3}]"

    def wf(s):
        return WF + 4 * (s % 4)

    k("s_cmp_ge_u32 s2, 256")
    k("s_cbranch_scc1 L_k1_done")
    k("s_load_dwordx2 s[4:5], s[0:1], 8")
    k("s_load_dwordx4 s[8:11], s[0:1], 32")
    k("s_load_dwordx2 s[6:7], s[0:1], 72")
    k("s_load_dwordx2 s[64:65], s[0:1], 48")
    k("s_load_dwordx2 s[66:67], s[0:1], 16")
    k("v_lshrrev_b32 v12, 6, v0")
    k("s_nop 0")
    k(f"v_readfirstlane_b32 s{sW}, v12")
    k("v_and_b32 v0, 63, v0")
    k(f"s_and_b32 s{sT0}, s2, 7")
    k(f"s_lshr_b32 s{sT1}, s2, 3")
    k(f"s_lshr_b32 s3, s{sT1}, 2")
    k(f"s_and_b32 s{sT1}, s{sT1}, 3")
    k(f"s_lshl_b32 s{sT0}, s{sT0}, 2")
    k(f"s_add_u32 s{sT0}, s{sT0}, s{sT1}")
    k(f"s_cmp_lt_u32 s{sT0}, 16")
    k("s_cbranch_scc0 L_k1_c1")
    k(f"s_mov_b32 s{sNp}, 5")
    k(f"s_mov_b32 s{sNq}, 1")
    k(f"s_mul_i32 s{sPoff}, s{sT0}, 5")
    k(f"s_mov_b32 s{sQoff}, s{sT0}")
    k("s_branch L_k1_cdone")
    k.label("L_k1_c1")
    k(f"s_mov_b32 s{sNp}, 4")
    k(f"s_sub_u32 s{sT1}, s{sT0}, 16")
    k(f"s_lshl_b32 s{sPoff}, s{sT1}, 2")
    k(f"s_add_u32 s{sPoff}, s{sPoff}, 80")
    k(f"s_cmp_lt_u32 s{sT0}, 22")
    k("s_cbranch_scc0 L_k1_c2")
    k(f"s_mov_b32 s{sNq}, 3")
    k(f"s_mul_i32 s{sQoff}, s{sT1}, 3")
    k(f"s_add_u32 s{sQoff}, s{sQoff}, 16")
    k("s_branch L_k1_cdone")
    k.label("L_k1_c2")
    k(f"s_mov_b32 s{sNq}, 2")
    k(f"s_sub_u32 s{sT1}, s{sT0}, 22")
    k(f"s_lshl_b32 s{sQoff}, s{sT1}, 1")
    k(f"s_add_u32 s{sQoff}, s{sQoff}, 34")
    k.label("L_k1_cdone")
    k(f"s_lshl_b32 s{sNp2}, s{sNp}, 1")
    k(f"s_add_u32 s{sNblk}, s{sNp2}, s{sNq}")
    k(f"s_lshl_b32 s{sT1}, s3, 2")
    k(f"s_add_u32 s{sT1}, s{sT1}, s{sW}")
    k(f"s_mul_i32 s{sHoOff}, s{sT1}, 162")
    k(f"s_add_u32 s{sHoOff}, s{sHoOff}, s{sPoff}")
    k(f"s_lshl_b32 s{sHoOff}, s{sHoOff}, 12")
    k(f"s_mul_i32 s{sQkvOff}, s{sT1}, {64*3456}")
    k(f"s_lshl_b32 s{sQoff}, s{sQoff}, 6")
    k(f"s_lshl_b32 s{sPoff}, s{sPoff}, 6")
    k(f"s_add_u32 s{sQkvOff}, s{sQkvOff}, s{sQoff}")
    k(f"s_add_u32 s{sQkvOff2}, s{sQkvOff}, {32*3456}")
    k(f"s_mul_i32 s{sXn}, s{sT1}, {2*36864}")
    k(f"s_mov_b32 s{sJq}, s{sQoff}")
    k(f"s_mov_b32 s{sJg}, s{sPoff}")
    k(f"s_mov_b32 s{sD}, 3")
    k(f"s_mov_b32 s{sIsUp}, 0")
    k(f"s_add_u32 s{sQoff}, s{sQoff}, 64")
    k(f"s_add_u32 s{sPoff}, s{sPoff}, 64")
    k(f"s_mov_b32 s{sStepQ}, {64*3456}")
    k(f"s_mov_b32 s{sStepG}, {64*9216}")
    k(f"s_mov_b32 s{sSzQ}, {576*3456}")
    k(f"s_mov_b32 s{sSzG}, {576*9216}")
    k(f"s_lshl_b32 s{sWbase}, s{sW}, 10")
    k(f"s_mov_b32 s{sSlotDma}, {3*SLOT}")
    k(f"s_mov_b32 s{sSlotRd}, {3*SLOT}")
    k("v_lshrrev_b32 v12, 2, v0")
    k(f"s_lshl_b32 s{sT0}, s{sW}, 4")
    k(f"v_add_u32 v12, s{sT0}, v12")
    k("v_and_b32 v13, 3, v0")
    k("v_lshlrev_b32 v13, 4, v13")
    k(f"s_movk_i32 s{sT0}, 3456")
    k(f"v_mad_u32_u24 v{vOffQ}, v12, s{sT0}, v13")
    k(f"s_movk_i32 s{sT0}, 9216")
    k(f"v_mad_u32_u24 v{vOffG}, v12, s{sT0}, v13")
    k("v_lshrrev_b32 v12, 5, v0")
    k(f"v_lshlrev_b32 v{vLaneRd}, 9, v12")
    k("v_bfe_u32 v12, v0, 2, 2")
    k(f"v_lshl_add_u32 v{vLaneRd}, v12, 6, v{vLaneRd}")
    k("v_bfe_u32 v12, v0, 4, 1")
    k(f"v_lshl_add_u32 v{vLaneRd}, v12, 5, v{vLaneRd}")
    k("v_and_b32 v12, 3, v0")
    k(f"v_lshl_add_u32 v{vLaneRd}, v12, 3, v{vLaneRd}")
    k(f"v_add_u32 v{vRdCur}, {SLOT}, v{vLaneRd}")
    k(f"v_add_u32 v{vOffD}, {2*SLOT}, v{vLaneRd}")
    k(f"v_add_u32 v{vRdNext}, {3*SLOT}, v{vLaneRd}")
    k("v_bfe_u32 v12, v0, 4, 1")
    k(f"v_lshlrev_b32 v{vHoOff}, 10, v12")
    k("v_lshrrev_b32 v12, 5, v0")
    k(f"v_lshl_add_u32 v{vHoOff}, v12, 8, v{vHoOff}")
    k("v_and_b32 v12, 15, v0")
    k(f"v_lshl_add_u32 v{vHoOff}, v12, 4, v{vHoOff}")
    k("v_lshrrev_b32 v12, 2, v0")
    k(f"v_mul_u32_u24 v{vQkvOff}, 3456, v12")
    k("v_and_b32 v13, 3, v0")
    k(f"v_lshl_add_u32 v{vQkvOff}, v13, 4, v{vQkvOff}")
    k(f"v_add_u32 v{vQkvOff2}, {16*3456}, v{vQkvOff}")
    k(f"s_lshl_b32 s{sT0}, s{sW}, 12")
    k(f"s_add_u32 s{sT0}, s{sT0}, {4*SLOT}")
    k("v_bfe_u32 v14, v12, 2, 2")
    k("v_xor_b32 v13, v13, v14")
    k("v_lshlrev_b32 v13, 4, v13")
    k(f"v_lshl_add_u32 v{vQr}, v12, 6, v13")
    k(f"v_add_u32 v{vQr}, s{sT0}, v{vQr}")
    k("v_and_b32 v12, 31, v0")
    k("v_bfe_u32 v14, v12, 2, 2")
    k("v_lshrrev_b32 v13, 5, v0")
    k("v_lshlrev_b32 v13, 3, v13")
    k("v_lshl_add_u32 v13, v12, 6, v13")
    k(f"v_add_u32 v13, s{sT0}, v13")
    for g in range(4):
        k(f"v_xor_b32 v15, {g}, v14")
        k(f"v_lshl_add_u32 v{vQw+g}, v15, 4, v13")
    k(f"v_lshlrev_b32 v{vXnOff}, 4, v0")
    code_prefetch(k, "k1_gemm1_kernel", K1_KB, sW, vXnOff, 84)
    c = 0.7978845608028654
    L2E = 1.4426950408889634
    k(f"v_mov_b32 v{vC0}, {hx(f2u(-2*c*L2E))}")
    k(f"v_mov_b32 v{vC1}, {hx(f2u(-2*c*0.044715*L2E))}")
    k("s_waitcnt lgkmcnt(0)")
    srd(k, 12, 6, 7, XN_SIZE, XN_OFF)
    srd(k, 16, 6, 7, QKV_SIZE, QKV_OFF)
    srd(k, 20, 6, 7, HO_SIZE, HO_OFF)
    k("s_and_b32 s5, s5, 0xffff")
    k("s_and_b32 s9, s9, 0xffff")
    k("s_and_b32 s11, s11, 0xffff")
    srd(k, 24, 8, 9, 576 * 9216)
    srd(k, 80, 4, 5, 576 * 3456)
    srd(k, 84, 8, 9, 576 * 9216)
    srd(k, 88, 10, 11, 576 * 9216)
    srd(k, 68, 64, 65, F * D * 2)
    srd(k, 72, 66, 67, D * D * 2)
    k("s_lshl_b32 s76, s2, 2")
    k(f"s_add_u32 s76, s76, s{sW}")
    k("s_lshl_b32 s77, s76, 10")
    k("s_mul_i32 s76, s76, 6144")
    stamp_init(k, 6, 7, sW)
    stamp(k, 250)

    def dma_setup():
        o = []
        o.append(f"s_cmp_eq_u32 s{sIsUp}, 0")
        o.append(f"s_cselect_b32 s{sXLo}, s8, s10")
        o.append(f"s_cselect_b32 s{sXHi}, s9, s11")
        o.append(f"s_sub_u32 s{sT0}, s{sD}, 1")
        o.append(f"s_cmp_ge_u32 s{sT0}, s{sNp2}")
        o.append(f"s_cselect_b32 s24, s4, s{sXLo}")
        o.append(f"s_cselect_b32 s25, s5, s{sXHi}")
        o.append(f"s_cselect_b32 s26, s{sSzQ}, s{sSzG}")
        o.append(f"s_cselect_b32 s{sSoff}, s{sQoff}, s{sPoff}")
        o.append(f"s_cselect_b32 s{sStep}, s{sStepQ}, s{sStepG}")
        o.append(f"s_cselect_b64 vcc, -1, 0")
        o.append(f"s_cselect_b32 s{sT0}, 64, 0")
        o.append(f"s_cselect_b32 s{sXLo}, 0, 1")
        o.append(f"v_cndmask_b32 v{vOffD}, v{vOffG}, v{vOffQ}, vcc")
        o.append(f"s_add_u32 s{sQoff}, s{sQoff}, s{sT0}")
        o.append(f"s_lshl_b32 s{sT0}, s{sIsUp}, 6")
        o.append(f"s_add_u32 s{sPoff}, s{sPoff}, s{sT0}")
        o.append(f"s_xor_b32 s{sIsUp}, s{sIsUp}, s{sXLo}")
        o.append(f"s_cmp_lt_u32 s{sD}, s{sNblk}")
        o.append(f"s_cselect_b32 s26, s26, 0")
        o.append(f"s_add_u32 s{sD}, s{sD}, 1")
        o.append(f"s_add_u32 s{sM0}, s{sSlotDma}, s{sWbase}")
        o.append(f"s_add_u32 s{sSlotDma}, s{sSlotDma}, {SLOT}")
        o.append(f"s_cmp_lt_u32 s{sSlotDma}, {K1_LDS}")
        o.append(f"s_cselect_b32 s{sSlotDma}, s{sSlotDma}, 0")
        return o

    def dma_one():
        return [f"s_mov_b32 m0, s{sM0}",
                f"s_add_u32 s{sM0}, s{sM0}, 4096",
                f"buffer_load_dwordx4 v{vOffD}, s[24:27], s{sSoff} offen lds",
                f"s_add_u32 s{sSoff}, s{sSoff}, s{sStep}"]

    def xn_load(rt, ks):
        off = rt * 36864 + ks * 1024
        return [f"s_add_u32 s{sCnt}, s{sXn}, {off}",
                f"buffer_load_dwordx4 {xn_reg(rt, ks)}, v{vXnOff}, s[12:15], s{sCnt} offen"]

    def tr_read(step, part, nxt):
        r = wf(step) + 2 * part
        a = vRdNext if nxt else vRdCur
        return f"ds_read_b64_tr_b16 v[{r}:{r+1}], v{a} offset:{(step % 36) * 1024 + part * 256}"

    vm = []

    def emit_vm(instrs, tag):
        for i in instrs:
            k(i)
        vm.append(tag)

    def vm_wait(tag):
        idx = max(i for i, t in enumerate(vm) if t == tag)
        return min(len(vm) - 1 - idx, 63)

    def j_group_ops(g):
        ops = []
        for b, (sr, so, vo, stp) in enumerate([(80, sJq, vOffQ, sStepQ), (84, sJg, vOffG, None), (88, sJg, vOffG, sStepG)]):
            ins = [f"s_add_u32 s{sT0}, s{sWbase}, {b*SLOT + g*4096}",
                   f"s_mov_b32 m0, s{sT0}",
                   "s_nop 0",
                   f"buffer_load_dwordx4 v{vo}, s[{sr}:{sr+3}], s{so} offen lds"]
            if stp is not None:
                ins.append(f"s_add_u32 s{so}, s{so}, s{stp}")
            ops.append((ins, f"g{g}"))
        for ks in range(4 * g, 4 * g + 4):
            for rt in range(2):
                ops.append((xn_load(rt, ks), f"x{ks}"))
        return ops

    JPRE = 2

    def blk_chunk(sr, slot, g):
        return [f"s_add_u32 s{sT0}, s{sWbase}, {slot*SLOT + g*4096}",
                f"s_mov_b32 m0, s{sT0}",
                f"s_add_u32 s{sT1}, s{sPoff}, {g*64*9216}",
                f"buffer_load_dwordx4 v{vOffG}, s[{sr}:{sr+3}], s{sT1} offen lds"]

    WFIRST = "--wfirst" in sys.argv

    def j_all_ops(g, only=None):
        ops = j_group_ops(g) + [(blk_chunk(84, 3, g), "d3")]
        if only == "w":
            ops = [o for o in ops if not o[1].startswith("x")]
        if only == "x":
            ops = [o for o in ops if o[1].startswith("x")]
        return ops

    if WFIRST:
        for ins, tag in j_all_ops(0):
            emit_vm(ins, tag)
        for g in range(1, 9):
            for ins, tag in j_all_ops(g, "w"):
                emit_vm(ins, tag)
        for ins, tag in j_all_ops(1, "x"):
            emit_vm(ins, tag)
    else:
        for g in range(JPRE):
            for ins, tag in j_all_ops(g):
                emit_vm(ins, tag)
    jbase = [vLaneRd, vRdCur, vOffD]
    jacc = [ACC[1], ACC[0], ACC[0] + 32]

    def j_read(step, b, part):
        r = JF + 12 * (step & 1) + 4 * b + 2 * part
        return f"ds_read_b64_tr_b16 v[{r}:{r+1}], v{jbase[b]} offset:{step*1024 + part*256}"

    k(f"s_waitcnt vmcnt({vm_wait('g0')})")
    k("s_barrier")
    stamp(k, 250)
    for b in range(3):
        for part in range(2):
            k(j_read(0, b, part))
    pend = []
    for s in range(36):
        g = s // 4
        if s % 4 == 0 and g + JPRE < 9:
            pend += j_all_ops(g + JPRE, "x" if WFIRST else None)
        if s % 4 == 0 and g >= 2:
            pend.append((blk_chunk(88, 0, g - 2), "d4"))
        k(f"s_waitcnt vmcnt({vm_wait('x%d' % s)})")
        if (s + 1) % 4 == 0 and s + 1 < 36:
            k(f"s_waitcnt vmcnt({vm_wait('g%d' % ((s + 1) // 4))})")
            k("s_barrier")
        if s == 33:
            k(f"s_waitcnt vmcnt({vm_wait('d3')})")
            k("s_barrier")
        k("s_waitcnt lgkmcnt(0)")
        n = 0
        for b in range(3):
            for rt in range(2):
                a = jacc[b] + 16 * rt
                cin = "0" if s == 0 else f"v[{a}:{a+15}]"
                r = JF + 12 * (s & 1) + 4 * b
                k(f"v_mfma_f32_32x32x16_bf16 v[{a}:{a+15}], v[{r}:{r+3}], {xn_reg(rt, s)}, {cin}")
                if s + 1 < 36:
                    k(j_read(s + 1, b, rt))
                if s >= 33 and b == 0:
                    k(tr_read(s - 33, rt, True))
                if pend and n < 4:
                    ins, tag = pend.pop(0)
                    emit_vm(ins, tag)
                n += 1
    assert not pend
    k(f"v_mov_b32 v{vRdCur}, v{vRdNext}")
    k("s_barrier")
    for g in (7, 8):
        for i in blk_chunk(88, 0, g):
            k(i)
    k(f"s_mov_b32 s{sIsUp}, 0")
    k(f"s_mov_b32 s{sD}, 5")
    k(f"s_add_u32 s{sPoff}, s{sPoff}, 64")
    k(f"s_mov_b32 s{sSlotDma}, {SLOT}")
    stamp(k, 250)

    def rdnext_update():
        return [f"s_add_u32 s{sSlotRd}, s{sSlotRd}, {SLOT}",
                f"s_cmp_lt_u32 s{sSlotRd}, {K1_LDS}",
                f"s_cselect_b32 s{sSlotRd}, s{sSlotRd}, 0",
                f"v_add_u32 v{vRdNext}, s{sSlotRd}, v{vLaneRd}"]

    def block_body(acc, fillers, late=None, prev_tail=0):
        own = []
        st = dma_setup()
        for i in range(0, len(st), 4):
            own.append((i // 4, st[i:i + 4]))
        for i in range(9):
            own.append((8 + 5 * i, dma_one()))
        lt = list(late or [])
        g = 50
        while lt:
            own.append((g, lt[:2]))
            lt = lt[2:]
            g += 1
        assert g <= 64
        own.append((64, rdnext_update()))
        q = list(fillers)
        per_gap = (len(q) + 57) // 58 if q else 0
        local_vm = 0
        tail = 0
        gap = 0

        def cnt(ins):
            nonlocal local_vm, tail
            if ins.startswith("buffer_"):
                local_vm += 1
                tail = 0 if ins.endswith("lds") else tail + 1
        for s in range(36):
            if s == 33:
                k(f"s_waitcnt vmcnt({min(63, local_vm + prev_tail)})")
                k("s_barrier")
            k("s_waitcnt lgkmcnt(4)")
            for rt in range(2):
                a = acc + 16 * rt
                cin = "0" if s == 0 else f"v[{a}:{a+15}]"
                k(f"v_mfma_f32_32x32x16_bf16 v[{a}:{a+15}], v[{wf(s)}:{wf(s)+3}], {xn_reg(rt, s)}, {cin}")
                k(tr_read(s + 3, rt, s + 3 >= 36))
                while own and own[0][0] <= gap:
                    for ins in own.pop(0)[1]:
                        k(ins)
                        cnt(ins)
                if gap >= 6:
                    for _ in range(per_gap):
                        if q:
                            ins = q.pop(0)
                            k(ins)
                            cnt(ins)
                gap += 1
        assert not q and not own, (len(q), len(own))
        k(f"v_mov_b32 v{vRdCur}, v{vRdNext}")
        stamp(k, 250)
        return tail

    def q_convert(acc):
        k("s_nop 7")
        k("s_nop 7")
        for rt in range(2):
            for g in range(4):
                a = acc + 16 * rt + 4 * g
                t = QT + 8 * rt + 2 * g
                k(f"v_cvt_pk_bf16_f32 v{t}, v{a}, v{a+1}")
                k(f"v_cvt_pk_bf16_f32 v{t+1}, v{a+2}, v{a+3}")
                k(f"ds_write_b64 v{vQw+g}, v[{t}:{t+1}] offset:{rt*2048}")
        k("s_waitcnt lgkmcnt(0)")
        for i in range(4):
            k(f"ds_read_b128 v[{QT+4*i}:{QT+4*i+3}], v{vQr} offset:{i*1024}")
        k("s_waitcnt lgkmcnt(0)")

    def q_stores(pad=0):
        o = []
        for i in range(4):
            so = sQkvOff if i < 2 else sQkvOff2
            o.append(f"buffer_store_dwordx4 v[{QT+4*i}:{QT+4*i+3}], v{vQkvOff+0}, s[16:19], s{so} offen" if i % 2 == 0 else
                     f"buffer_store_dwordx4 v[{QT+4*i}:{QT+4*i+3}], v{vQkvOff2}, s[16:19], s{so} offen")
            o += ["s_nop 0"] * pad
        o.append(f"s_add_u32 s{sQkvOff}, s{sQkvOff}, 64")
        o.append(f"s_add_u32 s{sQkvOff2}, s{sQkvOff2}, 64")
        return o

    def p_epilogue_instrs(accset):
        o = []
        for rt in range(2):
            for p in range(2):
                pk = TMP + 24 + 4 * ((rt * 2 + p) % 2)
                for pr in range(4):
                    g0 = accset + 16 * rt + 8 * p + 2 * pr
                    u0 = g0 + 32
                    t = TMP + 8 * (pr % 2)
                    if MIMIC:
                        o.append(f"v_cvt_pk_bf16_f32 v{t+6}, v{g0}, v{g0+1}")
                        o.append(f"v_cvt_pk_bf16_f32 v{t+7}, v{u0}, v{u0+1}")
                        o.append(f"v_lshlrev_b32 v{t+4}, 16, v{t+6}")
                        o.append(f"v_and_b32 v{t+5}, 0xffff0000, v{t+6}")
                        G0, G1 = t + 4, t + 5
                    else:
                        G0, G1 = g0, g0 + 1
                    o.append(f"v_mul_f32 v{t}, v{G0}, v{G0}")
                    o.append(f"v_mul_f32 v{t+1}, v{G1}, v{G1}")
                    o.append(f"v_fma_f32 v{t}, v{t}, v{vC1}, v{vC0}")
                    o.append(f"v_fma_f32 v{t+1}, v{t+1}, v{vC1}, v{vC0}")
                    o.append(f"v_mul_f32 v{t}, v{t}, v{G0}")
                    o.append(f"v_mul_f32 v{t+1}, v{t+1}, v{G1}")
                    o.append(f"v_exp_f32 v{t}, v{t}")
                    o.append(f"v_exp_f32 v{t+1}, v{t+1}")
                    if MIMIC:
                        o.append(f"v_lshlrev_b32 v{t+2}, 16, v{t+7}")
                    else:
                        o.append("s_nop 0")
                    o.append(f"v_add_f32 v{t}, 1.0, v{t}")
                    o.append(f"v_add_f32 v{t+1}, 1.0, v{t+1}")
                    o.append(f"v_rcp_f32 v{t}, v{t}")
                    o.append(f"v_rcp_f32 v{t+1}, v{t+1}")
                    if MIMIC:
                        o.append(f"v_and_b32 v{t+3}, 0xffff0000, v{t+7}")
                    else:
                        o.append("s_nop 0")
                    o.append(f"v_mul_f32 v{t}, v{t}, v{G0}")
                    o.append(f"v_mul_f32 v{t+1}, v{t+1}, v{G1}")
                    if MIMIC:
                        o.append(f"v_cvt_pk_bf16_f32 v{t+6}, v{t}, v{t+1}")
                        o.append(f"v_lshlrev_b32 v{t}, 16, v{t+6}")
                        o.append(f"v_and_b32 v{t+1}, 0xffff0000, v{t+6}")
                        o.append(f"v_mul_f32 v{t}, v{t}, v{t+2}")
                        o.append(f"v_mul_f32 v{t+1}, v{t+1}, v{t+3}")
                    else:
                        o.append(f"v_mul_f32 v{t}, v{t}, v{u0}")
                        o.append(f"v_mul_f32 v{t+1}, v{t+1}, v{u0+1}")
                    o.append(f"v_cvt_pk_bf16_f32 v{pk+pr}, v{t}, v{t+1}")
                o.append(f"buffer_store_dwordx4 v[{pk}:{pk+3}], v{vHoOff}, s[20:23], s{sHoOff} offen offset:{rt*2048 + p*512}{SC}")
        o.append(f"s_add_u32 s{sHoOff}, s{sHoOff}, 4096")
        return o

    def merge(a, b):
        out = []
        step = max(1, len(a) // (len(b) + 1))
        bi = 0
        for i, x in enumerate(a):
            out.append(x)
            if (i + 1) % step == 0 and bi < len(b):
                out.append(b[bi]); bi += 1
        out += b[bi:]
        return out

    def pair_body(accset, epi, late1=None, prev_tail=0):
        h = len(epi) // 2
        t0 = block_body(accset, epi[:h], None, prev_tail)
        return block_body(accset + 32, epi[h:], late1, t0)

    q_convert(ACC[1])
    srd(k, 60, 6, 7, QKV_SIZE, QKV_OFF)
    k("s_mov_b32 s58, 64")
    pf = []
    for i in range(6):
        if i % 4 == 0 and i:
            pf.append("s_add_u32 s76, s76, 4096")
        pf.append(f"buffer_load_dwordx4 v[240:243], v{vXnOff}, s[68:71], s76 offen offset:{1024*(i%4)}")
    pf.append(f"buffer_load_dwordx4 v[240:243], v{vXnOff}, s[72:75], s77 offen")
    pf += ["s_mov_b32 s70, 0", "s_mov_b32 s74, 0"]
    qs = [x.replace("s[16:19]", "s[60:63]").replace(", 64", ", s58") for x in q_stores()]
    qs += ["s_mov_b32 s62, 0", "s_mov_b32 s58, 0"]
    k(f"s_mov_b32 s{sCnt}, 1")
    k.label("L_k1_ploop")
    tB = pair_body(ACC[1], p_epilogue_instrs(ACC[0]), qs + pf)
    k(f"s_add_u32 s{sCnt}, s{sCnt}, 1")
    k(f"s_cmp_ge_u32 s{sCnt}, s{sNp}")
    k("s_cbranch_scc1 L_k1_endB")
    if "--wb" in sys.argv:
        k("s_cmp_lt_u32 s2, 8")
        k("s_cbranch_scc0 L_k1_nowb")
        k(f"s_cmp_eq_u32 s{sW}, 0")
        k("s_cbranch_scc0 L_k1_nowb")
        k("buffer_wbl2 sc1")
        k.label("L_k1_nowb")
    pair_body(ACC[0], p_epilogue_instrs(ACC[1]), None, tB)
    k(f"s_add_u32 s{sCnt}, s{sCnt}, 1")
    k(f"s_cmp_ge_u32 s{sCnt}, s{sNp}")
    k("s_cbranch_scc0 L_k1_ploop")
    k("s_nop 7")
    k("s_nop 7")
    for i in p_epilogue_instrs(ACC[0]):
        k(i)
    k("s_branch L_k1_qtail")
    k.label("L_k1_endB")
    k("s_nop 7")
    k("s_nop 7")
    for i in p_epilogue_instrs(ACC[1]):
        k(i)
    k.label("L_k1_qtail")
    stamp(k, 250)
    k(f"s_cmp_lt_u32 s{sNq}, 2")
    k("s_cbranch_scc1 L_k1_fin")
    block_body(ACC[0], [])
    q_convert(ACC[0])
    k(f"s_cmp_lt_u32 s{sNq}, 3")
    k("s_cbranch_scc1 L_k1_qst")
    block_body(ACC[0], q_stores(6))
    q_convert(ACC[0])
    k.label("L_k1_qst")
    for i in q_stores():
        k(i)
    k.label("L_k1_fin")
    stamp(k, 250)
    stamp_rt(k, 250)
    k.label("L_k1_done")
    k("s_endpgm")
    return k.text()


K3_R = 8
K3_PF = 6
K3_LDS = 163840
K3_GRID = 240


def gen_k3():
    global STAMP
    STAMP = "--stamp3" in sys.argv
    k = K()
    sW, sRb, sNt, sS0, sNY, sNS, sT0, sT1 = 28, 29, 30, 31, 32, 33, 35, 36
    sWoff, sM0b, sLd, sLim = 38, 39, 40, 41
    sH = 60
    vRd = 242
    vH, vX, vDma = 246, 247, 248
    ACCY, ACCS, WFR, TMP = 16, 96, 176, 216
    vRd2 = 1

    k("s_cmp_ge_u32 s2, 256")
    k("s_cbranch_scc1 L_k3_done")
    k("s_load_dwordx2 s[70:71], s[0:1], 72")
    k("v_mov_b32 v255, v0")
    k(f"s_cmp_ge_u32 s2, {K3_GRID}")
    k("s_cbranch_scc1 L_k3_attn_only")
    k("s_and_b32 s3, s2, 7")
    k("s_mul_i32 s3, s3, 30")
    k(f"s_lshr_b32 s{sT1}, s2, 3")
    k(f"s_add_u32 s3, s3, s{sT1}")
    k("s_cmp_ge_u32 s3, 234")
    k("s_cbranch_scc1 L_k3_attn_only")
    k("s_load_dwordx2 s[4:5], s[0:1], 0")
    k("s_load_dwordx2 s[6:7], s[0:1], 16")
    k("s_load_dwordx4 s[8:11], s[0:1], 48")
    k("s_load_dwordx2 s[12:13], s[0:1], 72")
    k("v_lshrrev_b32 v13, 6, v0")
    k("s_nop 0")
    k(f"v_readfirstlane_b32 s{sW}, v13")
    k("v_and_b32 v0, 63, v0")
    k(f"s_mul_hi_u32 s{sRb}, s3, {(1 << 32) // 9 + 1}")
    k(f"s_mul_i32 s{sT0}, s{sRb}, 9")
    k(f"s_sub_u32 s{sNt}, s3, s{sT0}")
    k(f"s_mul_i32 s{sS0}, s{sW}, 40")
    k(f"s_min_u32 s{sT0}, s{sW}, 2")
    k(f"s_add_u32 s{sS0}, s{sS0}, s{sT0}")
    k(f"s_cmp_lt_u32 s{sW}, 2")
    k(f"s_cselect_b32 s{sNY}, 41, 40")
    k(f"s_cmp_eq_u32 s{sW}, 3")
    k(f"s_cselect_b32 s{sNY}, 22, s{sNY}")
    k(f"s_cselect_b32 s{sNS}, 18, 0")
    k("v_lshrrev_b32 v13, 3, v0")
    k("v_bfe_u32 v14, v0, 1, 2")
    k("v_bfe_u32 v15, v0, 4, 2")
    k("v_xor_b32 v14, v14, v15")
    k("v_lshlrev_b32 v14, 5, v14")
    k("v_and_b32 v15, 1, v0")
    k("v_lshl_add_u32 v14, v15, 4, v14")
    k("v_mul_u32_u24 v13, 1152, v13")
    k("v_add_u32 v13, v13, v14")
    k(f"s_lshl_b32 s{sT0}, s{sNt}, 7")
    k(f"v_add_u32 v{vDma}, s{sT0}, v13")
    k("v_lshrrev_b32 v13, 5, v0")
    k("v_lshlrev_b32 v13, 4, v13")
    k("v_bfe_u32 v14, v0, 4, 1")
    k("v_lshl_add_u32 v13, v14, 2, v13")
    k("v_bfe_u32 v14, v0, 2, 2")
    k("v_add_u32 v13, v13, v14")
    k("v_bfe_u32 v14, v13, 1, 2")
    k("v_lshlrev_b32 v13, 7, v13")
    k("v_and_b32 v15, 3, v0")
    k("v_lshl_add_u32 v13, v15, 3, v13")
    k(f"s_lshl_b32 s{sM0b}, s{sW}, 12")
    k(f"v_add_u32 v13, s{sM0b}, v13")
    for ct in range(4):
        k(f"v_xor_b32 v15, {ct}, v14")
        k(f"v_lshl_add_u32 v{vRd+ct}, v15, 5, v13")
    k(f"v_lshlrev_b32 v{vH}, 4, v0")
    code_prefetch(k, "k3_gemm2_kernel", K3_KB, sW, vH, 44)
    k("s_waitcnt lgkmcnt(0)")
    srd(k, 16, 12, 13, HO_SIZE, HO_OFF)
    srd(k, 20, 8, 9, F * D * 2)
    srd(k, 24, 6, 7, D * D * 2)
    srd(k, 44, 4, 5, XN_SIZE)
    srd(k, 48, 10, 11, XN_SIZE)
    srd(k, 52, 8, 9, F * D * 2)
    srd(k, 72, 70, 71, FLAG_SIZE, FLAG_OFF)
    stamp_init(k, 12, 13, sW)
    stamp(k, 252)
    for i in range(5):
        k(f"s_mul_i32 s{sT0}, s{sRb}, 5")
        k(f"s_add_u32 s{sT0}, s{sT0}, {i}")
        k(f"s_lshr_b32 s{sT1}, s{sT0}, 2")
        k(f"s_mul_i32 s{sT1}, s{sT1}, 162")
        k(f"s_add_u32 s{sT1}, s{sT1}, s{sS0}")
        k(f"s_lshl_b32 s{sT1}, s{sT1}, 12")
        k(f"s_and_b32 s{sT0}, s{sT0}, 3")
        k(f"s_lshl_b32 s{sT0}, s{sT0}, 10")
        k(f"s_add_u32 s{sH+i}, s{sT1}, s{sT0}")
    k(f"s_cmp_eq_u32 s{sRb}, 25")
    k("s_cselect_b32 s79, 24, 40")
    k("v_cmp_gt_u32 vcc, s79, v0")
    k("v_cndmask_b32 v251, 0, v0, vcc")
    k(f"s_mul_i32 s{sT0}, s{sRb}, 160")
    k("v_lshlrev_b32 v251, 2, v251")
    k(f"v_add_u32 v251, s{sT0}, v251")
    k("v_mov_b32 v250, 0")
    k(f"s_lshl_b32 s{sT0}, s2, 2")
    k(f"s_add_u32 s{sT0}, s{sT0}, s{sW}")
    k(f"s_lshl_b32 s{sT0}, s{sT0}, 2")
    k(f"v_mov_b32 v249, s{sT0}")
    k("v_mov_b32 v254, 1")
    k(f"s_add_u32 s83, s{sS0}, {K3_PF + 5}")
    k(f"s_mul_i32 s{sWoff}, s{sS0}, {32*1152}")
    k(f"s_mov_b32 s{sLd}, s{sS0}")
    k(f"s_add_u32 s{sLim}, s{sS0}, s{sNY}")
    k(f"s_add_u32 s{sLim}, s{sLim}, s{sNS}")

    uid = [0]

    def issue_list(st, poll=False):
        g = []
        pre = []
        if poll:
            u = uid[0]; uid[0] += 1
            pre += [f"s_cmp_lg_u32 s{sLd}, s83",
                    f"s_cbranch_scc1 L_k3_p0_{u}",
                    "s_mov_b64 exec, 1",
                    "buffer_store_dword v254, v249, s[72:75], 0 offen sc1",
                    "s_mov_b64 exec, -1",
                    f"L_k3_p0_{u}:",
                    f"s_cmp_lg_u32 s{sLd}, 136",
                    f"s_cbranch_scc1 L_k3_p1_{u}",
                    "buffer_load_dword v250, v251, s[72:75], 0 offen sc1",
                    f"L_k3_p1_{u}:",
                    f"s_cmp_lg_u32 s{sLd}, 144",
                    f"s_cbranch_scc1 L_k3_p2_{u}",
                    f"L_k3_sp_{u}:",
                    "v_cmp_ne_u32 vcc, 1, v250",
                    "s_nop 3",
                    "s_cmp_eq_u64 vcc, 0",
                    f"s_cbranch_scc1 L_k3_p2_{u}",
                    "s_sleep 8",
                    "buffer_load_dword v250, v251, s[72:75], 0 offen sc1",
                    "s_waitcnt vmcnt(0)",
                    f"s_branch L_k3_sp_{u}",
                    f"L_k3_p2_{u}:"]
        pre += [f"s_cmp_eq_u32 s{sLd}, 144",
               "s_cselect_b32 s52, s24, s52",
               "s_cselect_b32 s53, s25, s53",
               "s_cselect_b32 s54, s26, s54",
               f"s_cselect_b32 s{sWoff}, 0, s{sWoff}",
               f"s_cmp_lt_u32 s{sLd}, s{sLim}",
               "s_cselect_b32 s54, s54, 0",
               "s_cselect_b32 s18, s18, 0",
               f"s_add_u32 s{sLd}, s{sLd}, 1"]
        for i in range(4):
            o = list(pre) if i == 0 else []
            o += [f"s_add_u32 s{sT0}, s{sM0b}, {st*16384 + i*1024}",
                  f"s_mov_b32 m0, s{sT0}",
                  f"s_add_u32 s{sT1}, s{sWoff}, {i*8*1152}",
                  f"buffer_load_dwordx4 v{vDma}, s[52:55], s{sT1} offen lds"]
            g.append(o)
        for j in range(5):
            r = 20 * st + 4 * j
            o = [f"buffer_load_dwordx4 a[{r}:{r+3}], v{vH}, s[16:19], s{sH+j} offen{HSC}",
                 f"s_add_u32 s{sH+j}, s{sH+j}, 4096"]
            if j == 4:
                o.append(f"s_add_u32 s{sWoff}, s{sWoff}, {32*1152}")
            g.append(o)
        return g

    def tr_reads(st, par):
        for ct in range(4):
            r = WFR + 16 * par + 4 * ct
            for part in range(2):
                k(f"ds_read_b64_tr_b16 v[{r+2*part}:{r+2*part+1}], v{(vRd if st < 4 else vRd2)+ct} offset:{(st%4)*16384 + part*1024}")

    pg = []
    for st in range(K3_PF):
        pg += issue_list(st)
    gen_k2(k, pg)
    for ct in range(4):
        k(f"v_add_u32 v{vRd2+ct}, 65536, v{vRd+ct}")
    stamp(k, 252)
    for r in range(ACCY, ACCY + 160):
        k(f"v_mov_b32 v{r}, 0")
    k(f"s_waitcnt vmcnt({9*(K3_PF-1)})")
    tr_reads(0, 0)

    def step_body(st, acc):
        par = st & 1
        k(f"s_waitcnt vmcnt({9*(K3_PF-2)})")
        tr_reads((st + 1) % K3_R, par ^ 1)
        groups = issue_list((st + K3_PF) % K3_R, poll=(acc == ACCY))
        n = 0
        for ct in range(4):
            k(f"s_waitcnt lgkmcnt({8 + 6 - 2*ct})")
            r = WFR + 16 * par + 4 * ct
            for mt in range(5):
                a = acc + 4 * (mt * 4 + ct)
                h = 20 * st + 4 * mt
                k(f"v_mfma_f32_16x16x32_bf16 v[{a}:{a+3}], v[{r}:{r+3}], a[{h}:{h+3}], v[{a}:{a+3}]")
                if n % 2 == 1 and groups:
                    for i in groups.pop(0):
                        k(i)
                n += 1
        assert not groups

    def emit_loop(tag, acc, cnt, exits):
        for st in range(K3_R):
            k.label(f"L_k3_{tag}{st}")
            k(f"s_cmp_eq_u32 s{cnt}, 0")
            k(f"s_cbranch_scc1 {exits[st]}")
            k(f"s_sub_u32 s{cnt}, s{cnt}, 1")
            if st == 0:
                stamp(k, 252)
            step_body(st, acc)
        k(f"s_branch L_k3_{tag}0")

    emit_loop("y", ACCY, sNY, [f"L_k3_s{st}" for st in range(K3_R)])
    emit_loop("s", ACCS, sNS, ["L_k3_red"] * K3_R)
    k.label("L_k3_red")
    stamp(k, 252)
    k("s_waitcnt vmcnt(0) lgkmcnt(0)")
    k("s_barrier")
    k(f"v_lshlrev_b32 v{TMP}, 4, v0")
    k(f"s_mul_i32 s{sT0}, s{sW}, {20*1024}")
    k(f"v_add_u32 v{TMP+1}, s{sT0}, v{TMP}")
    k("s_nop 7")
    for f in range(20):
        a = ACCY + 4 * f
        k(f"ds_write_b128 v{TMP+1}, v[{a}:{a+3}] offset:{f*1024}")
    k(f"s_cmp_eq_u32 s{sW}, 3")
    k("s_cbranch_scc0 L_k3_nos")
    k(f"v_add_u32 v{TMP+2}, {80*1024}, v{TMP}")
    for f in range(20):
        a = ACCS + 4 * f
        k(f"ds_write_b128 v{TMP+2}, v[{a}:{a+3}] offset:{f*1024}")
    k.label("L_k3_nos")
    k(f"s_mul_i32 s{sT0}, s{sRb}, 80")
    k("v_and_b32 v13, 15, v0")
    k(f"v_add_u32 v13, s{sT0}, v13")
    k("v_mul_u32_u24 v13, 1152, v13")
    k("v_lshrrev_b32 v14, 4, v0")
    k("v_lshl_add_u32 v13, v14, 3, v13")
    k(f"s_lshl_b32 s{sT0}, s{sNt}, 7")
    k(f"s_lshl_b32 s{sT1}, s{sW}, 5")
    k(f"s_add_u32 s{sT0}, s{sT0}, s{sT1}")
    k(f"v_add_u32 v{vX}, s{sT0}, v13")
    XR = TMP + 4
    for mt in range(5):
        k(f"s_mov_b32 s{sH+mt}, {mt*16*1152}")
        k(f"buffer_load_dwordx2 v[{XR+2*mt}:{XR+2*mt+1}], v{vX}, s[44:47], s{sH+mt} offen")
    k("s_waitcnt lgkmcnt(0)")
    k("s_barrier")
    k(f"s_lshl_b32 s{sT0}, s{sW}, 10")
    k(f"v_add_u32 v{TMP+1}, s{sT0}, v{TMP}")
    k(f"v_add_u32 v{TMP+3}, {40*1024}, v{TMP+1}")
    for src in range(4):
        for mt in range(5):
            a = ACCY + 4 * (src * 5 + mt)
            b = TMP + 1 if src < 2 else TMP + 3
            k(f"ds_read_b128 v[{a}:{a+3}], v{b} offset:{(src%2)*20*1024 + mt*4096}")
    k(f"v_add_u32 v{TMP+2}, {80*1024}, v{TMP+1}")
    for mt in range(5):
        a = ACCS + 4 * mt
        k(f"ds_read_b128 v[{a}:{a+3}], v{TMP+2} offset:{mt*4096}")
    k("s_waitcnt lgkmcnt(0)")
    for mt in range(5):
        for r in range(4):
            a = ACCY + 4 * mt + r
            k(f"v_add_f32 v{a}, v{a}, v{a+20}")
            k(f"v_add_f32 v{a+40}, v{a+40}, v{a+60}")
            k(f"v_add_f32 v{a}, v{a}, v{a+40}")
    k("s_waitcnt vmcnt(0)")
    L2E = f2u(-1.4426950408889634)
    for mt in range(5):
        for pr in range(2):
            y0 = ACCY + 4 * mt + 2 * pr
            s0 = ACCS + 4 * mt + 2 * pr
            t = 176 + 8 * pr
            k(f"v_cvt_pk_bf16_f32 v{t}, v{y0}, v{y0+1}")
            k(f"v_cvt_pk_bf16_f32 v{t+1}, v{s0}, v{s0+1}")
            k(f"v_lshlrev_b32 v{t+2}, 16, v{t}")
            k(f"v_and_b32 v{t+3}, 0xffff0000, v{t}")
            k(f"v_mul_f32 v{t+4}, {hx(L2E)}, v{t+2}")
            k(f"v_mul_f32 v{t+5}, {hx(L2E)}, v{t+3}")
            k(f"v_exp_f32 v{t+4}, v{t+4}")
            k(f"v_exp_f32 v{t+5}, v{t+5}")
            k(f"v_lshlrev_b32 v{t+6}, 16, v{t+1}")
            k(f"v_add_f32 v{t+4}, 1.0, v{t+4}")
            k(f"v_add_f32 v{t+5}, 1.0, v{t+5}")
            k(f"v_rcp_f32 v{t+4}, v{t+4}")
            k(f"v_rcp_f32 v{t+5}, v{t+5}")
            k(f"v_and_b32 v{t+7}, 0xffff0000, v{t+1}")
            k(f"v_mul_f32 v{t+4}, v{t+4}, v{t+2}")
            k(f"v_mul_f32 v{t+5}, v{t+5}, v{t+3}")
            k(f"v_cvt_pk_bf16_f32 v{t}, v{t+4}, v{t+5}")
            k(f"v_lshlrev_b32 v{t+4}, 16, v{t}")
            k(f"v_and_b32 v{t+5}, 0xffff0000, v{t}")
            k(f"v_mul_f32 v{t+4}, v{t+4}, v{t+6}")
            k(f"v_mul_f32 v{t+5}, v{t+5}, v{t+7}")
            k(f"v_cvt_pk_bf16_f32 v{t}, v{t+4}, v{t+5}")
            k(f"v_lshlrev_b32 v{t+4}, 16, v{t}")
            k(f"v_and_b32 v{t+5}, 0xffff0000, v{t}")
            xr = XR + 2 * mt + pr
            k(f"v_lshlrev_b32 v{t+6}, 16, v{xr}")
            k(f"v_and_b32 v{t+7}, 0xffff0000, v{xr}")
            k(f"v_add_f32 v{t+4}, v{t+4}, v{t+6}")
            k(f"v_add_f32 v{t+5}, v{t+5}, v{t+7}")
            k(f"v_cvt_pk_bf16_f32 v{xr}, v{t+4}, v{t+5}")
        k(f"buffer_store_dwordx2 v[{XR+2*mt}:{XR+2*mt+1}], v{vX}, s[48:51], s{sH+mt} offen")
    stamp(k, 252)
    stamp_rt(k, 252)
    k("s_endpgm")
    k.label("L_k3_attn_only")
    gen_k2(k)
    srd(k, 72, 70, 71, FLAG_SIZE, FLAG_OFF)
    k("v_lshrrev_b32 v1, 6, v255")
    k("s_lshl_b32 s3, s2, 2")
    k("v_add_u32 v249, s3, v1")
    k("v_lshlrev_b32 v249, 2, v249")
    k("v_mov_b32 v254, 1")
    k("s_waitcnt vmcnt(0)")
    k("s_mov_b64 exec, 1")
    k("buffer_store_dword v254, v249, s[72:75], 0 offen sc1")
    k.label("L_k3_done")
    k("s_endpgm")
    return k.text()


def main():
    ref = open(f"cdna_kernels/{NAME}.s.ref").read().splitlines()
    head = []
    for line in ref:
        if line.startswith("; @launch") or line.startswith("; Override") or line.startswith("; grid="):
            continue
        if not line.startswith(";"):
            break
        head.append(line)
    out = "\n".join(head) + "\n"
    out += "; @launch kernel=k0_ln_kernel grid=(256,1,1) block=(256,1,1) lds=0\n"
    out += f"; @launch kernel=k1_gemm1_kernel grid=(256,1,1) block=(256,1,1) lds={K1_LDS_ALLOC}\n"
    out += f"; @launch kernel=k3_gemm2_kernel grid=(256,1,1) block=(256,1,1) lds={K3_LDS}\n"
    out += '.amdgcn_target "amdgcn-amd-amdhsa--gfx950"\n.text\n'
    out += kernel_header("k0_ln_kernel") + gen_k0()
    out += kernel_header("k1_gemm1_kernel") + gen_k1()
    out += kernel_header("k3_gemm2_kernel") + gen_k3()
    out += '.section .rodata,"a"\n.p2align 6\n'
    out += kernel_desc("k0_ln_kernel", 88, 88)
    out += ".p2align 6\n" + kernel_desc("k1_gemm1_kernel", 512, 256)
    out += ".p2align 6\n" + kernel_desc("k3_gemm2_kernel", 512, 256)
    path = sys.argv[1] if len(sys.argv) > 1 and not sys.argv[1].startswith("--") else f"cdna_kernels/{NAME}.s"
    open(path, "w").write(out)
    print("wrote", path, len(out), "bytes")


if __name__ == "__main__":
    main()
```

```python
import struct, sys

NAME = "recurrent_scan__sliding_local_dilated__geglu_ffn__prompt"
S, D, F = 2048, 576, 4608
XN_OFF = 0
XN_SIZE = S * D * 2
QKV_OFF = XN_OFF + XN_SIZE
QKV_SIZE = S * 1728 * 2
HO_OFF = QKV_OFF + QKV_SIZE
HO_SIZE = 32 * 162 * 4096
FLAG_OFF = 31 << 20
FLAG_SIZE = 8192

STAMP = False
STAMPK = [a for a in sys.argv if a.startswith("--stamp")]
STAMP_OFF = 48 << 20
SC = " sc1" if "--sc1" in sys.argv else ""
if "--nt" in sys.argv:
    SC = " nt"
if "--sc01" in sys.argv:
    SC = " sc0 sc1"
HSC = "" if "--hplain" in sys.argv else " sc1"
MIMIC = "--nomimic" not in sys.argv


def f2u(x):
    return struct.unpack("<I", struct.pack("<f", x))[0]


def hx(x):
    return "0x%08x" % (x & 0xFFFFFFFF)


class K:
    def __init__(self):
        self.l = []

    def __call__(self, s):
        self.l.append(s if s.endswith(":") else "    " + s)

    def label(self, s):
        self.l.append(s + ":")

    def c(self, s):
        self.l.append("    ; " + s)

    def text(self):
        return "\n".join(self.l) + "\n"


def srd(k, base, lo, hi, size, add=0):
    if add:
        k(f"s_add_u32 s{base}, s{lo}, {hx(add)}")
        k(f"s_addc_u32 s{base+1}, s{hi}, 0")
    else:
        k(f"s_mov_b32 s{base}, s{lo}")
        k(f"s_mov_b32 s{base+1}, s{hi}")
    k(f"s_and_b32 s{base+1}, s{base+1}, 0xffff")
    k(f"s_mov_b32 s{base+2}, {hx(size)}")
    k(f"s_mov_b32 s{base+3}, 0x00020000")


def stamp_init(k, wslo, wshi, wavereg):
    if not STAMP:
        return
    srd(k, 92, wslo, wshi, 1 << 20, STAMP_OFF)
    k(f"s_lshl_b32 s97, s2, 2")
    k(f"s_add_u32 s97, s97, s{wavereg}")
    k(f"s_lshl_b32 s97, s97, 8")
    k(f"s_mov_b32 s96, 0")
    k(f"s_movk_i32 s100, 248")
    stamp_rt(k, 250)


def stamp(k, vt):
    if not STAMP:
        return
    k("s_memrealtime s[98:99]" if "--rt" in sys.argv else "s_memtime s[98:99]")
    k("s_waitcnt lgkmcnt(0)")
    k(f"v_mov_b32 v{vt}, s98")
    k(f"v_mov_b32 v{vt+1}, s97")
    k(f"buffer_store_dword v{vt}, v{vt+1}, s[92:95], s96 offen")
    k("s_add_u32 s96, s96, 4")


def stamp_rt(k, vt):
    if not STAMP:
        return
    k("s_memrealtime s[98:99]")
    k("s_waitcnt lgkmcnt(0)")
    k(f"v_mov_b32 v{vt}, s98")
    k(f"v_mov_b32 v{vt+1}, s97")
    k(f"buffer_store_dword v{vt}, v{vt+1}, s[92:95], s100 offen")
    k("s_add_u32 s100, s100, 4")


def code_prefetch(k, label, nkb, sW, vLin, sA):
    if "--nocpf" in sys.argv:
        return
    k(f"s_getpc_b64 s[{sA}:{sA+1}]")
    k(f"L_pc_{label}:")
    k(f"s_sub_u32 s{sA}, s{sA}, L_pc_{label}-{label}")
    k(f"s_subb_u32 s{sA+1}, s{sA+1}, 0")
    k(f"s_and_b32 s{sA+1}, s{sA+1}, 0xffff")
    k(f"s_mov_b32 s{sA+2}, {nkb*1024}")
    k(f"s_mov_b32 s{sA+3}, 0x00020000")
    k(f"s_lshr_b32 s{sA+4}, s2, 3")
    k(f"s_lshl_b32 s{sA+4}, s{sA+4}, 2")
    k(f"s_add_u32 s{sA+4}, s{sA+4}, s{sW}")
    k(f"s_lshl_b32 s{sA+4}, s{sA+4}, 10")
    k(f"buffer_load_dwordx4 v[236:239], v{vLin}, s[{sA}:{sA+3}], s{sA+4} offen")


def kernel_header(name):
    return (f".globl {name}\n.p2align 8\n.type {name},@function\n{name}:\n")


def kernel_desc(name, vgpr, accum, sgpr=102):
    return f""".amdhsa_kernel {name}
  .amdhsa_next_free_vgpr {vgpr}
  .amdhsa_next_free_sgpr {sgpr}
  .amdhsa_accum_offset {accum}
  .amdhsa_group_segment_fixed_size 0
  .amdhsa_kernarg_size 80
  .amdhsa_user_sgpr_count 2
  .amdhsa_user_sgpr_kernarg_segment_ptr 1
  .amdhsa_system_sgpr_workgroup_id_x 1
.end_amdhsa_kernel
"""


def gen_k0():
    k = K()
    k("s_cmp_ge_u32 s2, 256")
    k("s_cbranch_scc1 L_k0_done")
    k("s_load_dwordx2 s[4:5], s[0:1], 0")
    k("s_load_dwordx2 s[6:7], s[0:1], 72")
    k("s_load_dwordx2 s[32:33], s[0:1], 8")
    k("s_load_dwordx4 s[36:39], s[0:1], 32")
    k("v_lshrrev_b32 v1, 6, v0")
    k("s_nop 0")
    k("v_readfirstlane_b32 s30, v1")
    k("v_and_b32 v0, 63, v0")
    k("v_lshlrev_b32 v7, 4, v0")
    k("s_cmp_eq_u32 s30, 0")
    k("s_cbranch_scc1 L_k0_ln")
    k("s_mul_i32 s31, s2, 3")
    k("s_add_u32 s31, s31, s30")
    k("s_sub_u32 s31, s31, 1")
    k("s_waitcnt lgkmcnt(0)")
    if "--nopf0" not in sys.argv:
        srd(k, 40, 32, 33, 576 * 3456)
        srd(k, 44, 36, 37, 576 * 9216)
        srd(k, 48, 38, 39, 576 * 9216)
        k("s_mul_i32 s34, s31, 3072")
        k("s_mul_i32 s35, s31, 7168")
        k("s_add_u32 s52, s35, 4096")
        for i in range(3):
            k(f"buffer_load_dwordx4 v[140:143], v7, s[40:43], s34 offen offset:{1024*i}")
        for i in range(7):
            so = 35 if i < 4 else 52
            k(f"buffer_load_dwordx4 v[140:143], v7, s[44:47], s{so} offen offset:{1024*(i%4)}")
            k(f"buffer_load_dwordx4 v[144:147], v7, s[48:51], s{so} offen offset:{1024*(i%4)}")
    srd(k, 56, 6, 7, FLAG_SIZE, FLAG_OFF)
    k("s_lshl_b32 s34, s2, 4")
    k("v_lshlrev_b32 v8, 2, v0")
    k("v_mov_b32 v9, 0")
    k("s_mov_b64 exec, 15")
    k("buffer_store_dword v9, v8, s[56:59], s34 offen")
    k("s_mov_b64 exec, -1")
    k("s_branch L_k0_wait")
    k.label("L_k0_ln")
    k("v_lshrrev_b32 v1, 3, v0")
    k("v_and_b32 v2, 7, v0")
    k("s_lshl_b32 s3, s2, 3")
    k("v_add_u32 v3, s3, v1")
    k("v_mul_u32_u24 v4, 1152, v3")
    k("v_lshl_add_u32 v4, v2, 4, v4")
    k("v_lshrrev_b32 v5, 5, v3")
    k("v_mul_u32_u24 v5, 36864, v5")
    k("v_lshrrev_b32 v6, 1, v2")
    k("v_lshl_add_u32 v5, v6, 10, v5")
    k("v_and_b32 v6, 1, v2")
    k("v_lshl_add_u32 v5, v6, 9, v5")
    k("v_and_b32 v6, 31, v3")
    k("v_lshl_add_u32 v5, v6, 4, v5")
    k("s_waitcnt lgkmcnt(0)")
    srd(k, 8, 4, 5, XN_SIZE)
    srd(k, 12, 6, 7, XN_SIZE, XN_OFF)
    for i in range(9):
        k(f"buffer_load_dwordx4 v[{16+4*i}:{19+4*i}], v4, s[8:11], 0 offen offset:{128*i}")
    for i in range(9):
        k(f"s_mov_b32 s{20+i}, {4096*i}")
    k("v_mov_b32 v8, 0")
    k("v_mov_b32 v9, 0")
    for i in range(9):
        k(f"s_waitcnt vmcnt({8-i})")
        for j in range(4):
            r = 16 + 4 * i + j
            o = 64 + 8 * i + 2 * j
            k(f"v_lshlrev_b32 v{o}, 16, v{r}")
            k(f"v_and_b32 v{o+1}, 0xffff0000, v{r}")
            k(f"v_add_f32 v8, v8, v{o}")
            k(f"v_add_f32 v9, v9, v{o+1}")
    k("v_add_f32 v8, v8, v9")

    def red8(r):
        k("s_nop 1")
        k(f"v_add_f32_dpp v{r}, v{r}, v{r} quad_perm:[1,0,3,2] row_mask:0xf bank_mask:0xf")
        k("s_nop 1")
        k(f"v_add_f32_dpp v{r}, v{r}, v{r} quad_perm:[2,3,0,1] row_mask:0xf bank_mask:0xf")
        k("s_nop 1")
        k(f"v_add_f32_dpp v{r}, v{r}, v{r} row_half_mirror row_mask:0xf bank_mask:0xf")
    red8(8)
    k(f"v_mul_f32 v8, {hx(f2u(1.0/576.0))}, v8")
    k("v_mov_b32 v10, 0")
    k("v_mov_b32 v11, 0")
    for e in range(0, 72, 2):
        k(f"v_sub_f32 v12, v{64+e}, v8")
        k(f"v_sub_f32 v13, v{65+e}, v8")
        k("v_fmac_f32 v10, v12, v12")
        k("v_fmac_f32 v11, v13, v13")
    k("v_add_f32 v10, v10, v11")
    red8(10)
    k(f"v_mul_f32 v10, {hx(f2u(1.0/576.0))}, v10")
    k("v_cvt_pk_bf16_f32 v8, v8, v10")
    k("v_and_b32 v10, 0xffff0000, v8")
    k("v_lshlrev_b32 v8, 16, v8")
    k(f"v_add_f32 v10, {hx(f2u(1e-5))}, v10")
    k("v_cvt_pk_bf16_f32 v10, v10, v10")
    k("v_lshlrev_b32 v10, 16, v10")
    k("v_sqrt_f32 v10, v10")
    k("s_nop 0")
    k("v_cvt_pk_bf16_f32 v10, v10, v10")
    k("v_lshlrev_b32 v10, 16, v10")
    k("v_rcp_f32 v10, v10")
    k("s_nop 0")
    for i in range(9):
        for j in range(4):
            o = 64 + 8 * i + 2 * j
            r = 16 + 4 * i + j
            k(f"v_sub_f32 v12, v{o}, v8")
            k(f"v_sub_f32 v13, v{o+1}, v8")
            k("v_cvt_pk_bf16_f32 v12, v12, v13")
            k("v_and_b32 v13, 0xffff0000, v12")
            k("v_lshlrev_b32 v12, 16, v12")
            k("v_mul_f32 v12, v12, v10")
            k("v_mul_f32 v13, v13, v10")
            k(f"v_cvt_pk_bf16_f32 v{r}, v12, v13")
        k(f"buffer_store_dwordx4 v[{16+4*i}:{19+4*i}], v5, s[12:15], s{20+i} offen")
    k.label("L_k0_wait")
    k("s_waitcnt vmcnt(0)")
    if "--k0sleep" in sys.argv:
        for _ in range(8):
            k("s_sleep 127")
    k.label("L_k0_done")
    k("s_endpgm")
    return k.text()


OST = 131072
uid2 = [0]


class Inject:
    def __init__(self, k, groups, every):
        self.k, self.groups, self.every, self.n, self.done = k, list(groups), every, 0, 0

    def __call__(self, s):
        self.k(s)
        self.n += 1
        if self.groups and self.n % self.every == 0 and not s.startswith("s_nop") and not s.startswith("v_cmp"):
            for i in self.groups.pop(0):
                self.k(i)
            self.done += 1

    def flush(self):
        while self.groups:
            for i in self.groups.pop(0):
                self.k(i)
            self.done += 1

    def label(self, s):
        self.k.label(s)


def gen_k2(k=None, groups=None):
    fused = k is not None
    if not fused:
        k = K()
        k("s_cmp_ge_u32 s2, 256")
        k("s_cbranch_scc1 L_k2_done")
    k("s_load_dwordx2 s[6:7], s[0:1], 72")
    tid = "v255" if fused else "v0"
    k(f"v_and_b32 v1, 31, {tid}")
    k(f"v_lshrrev_b32 v2, 5, {tid}")
    k("s_lshl_b32 s3, s2, 3")
    k("v_add_u32 v2, s3, v2")
    k("v_mul_u32_u24 v3, 36, v1")
    k("s_waitcnt lgkmcnt(0)")
    srd(k, 8, 6, 7, QKV_SIZE, QKV_OFF)
    srd(k, 12, 6, 7, HO_SIZE, HO_OFF)
    QB, KB, VB = 16, 32, 112
    k("s_movk_i32 s80, 3456")
    for j in range(8):
        k(f"v_subrev_u32 v12, {2*j}, v2")
        k("v_max_i32 v12, 0, v12")
        k(f"v_mad_u32_u24 v{4+j}, v12, s80, v3")
    k(f"buffer_load_dwordx4 v[{QB}:{QB+3}], v4, s[8:11], 0 offen")
    k(f"buffer_load_dwordx4 v[{QB+4}:{QB+7}], v4, s[8:11], 0 offen offset:16")
    k(f"buffer_load_dword v{QB+8}, v4, s[8:11], 0 offen offset:32")
    for j in range(8):
        b = KB + 10 * j
        k(f"buffer_load_dwordx4 v[{b}:{b+3}], v{4+j}, s[8:11], 0 offen offset:1152")
        k(f"buffer_load_dwordx4 v[{b+4}:{b+7}], v{4+j}, s[8:11], 0 offen offset:1168")
        k(f"buffer_load_dword v{b+8}, v{4+j}, s[8:11], 0 offen offset:1184")
    for j in range(8):
        b = VB + 10 * j
        k(f"buffer_load_dwordx4 v[{b}:{b+3}], v{4+j}, s[8:11], 0 offen offset:2304")
        k(f"buffer_load_dwordx4 v[{b+4}:{b+7}], v{4+j}, s[8:11], 0 offen offset:2320")
        k(f"buffer_load_dword v{b+8}, v{4+j}, s[8:11], 0 offen offset:2336")
    k0_ = k
    k = Inject(k0_, groups or [], 8)
    k("v_and_b32 v12, 7, v2")
    k("v_lshlrev_b32 v12, 4, v12")
    k(f"v_add_u32 v12, {OST}, v12")
    k("v_mul_u32_u24 v14, 18, v1")
    for t in range(9):
        o = 200 + t
        k(f"v_add_u32 v13, {2*t}, v14")
        k(f"v_lshrrev_b32 v15, 4, v13")
        k(f"v_lshl_add_u32 v{o}, v15, 8, v12")
        k(f"v_bfe_u32 v15, v13, 2, 1")
        k(f"v_lshl_add_u32 v{o}, v15, 7, v{o}")
        k(f"v_bfe_u32 v15, v13, 3, 1")
        k(f"v_lshl_add_u32 v{o}, v15, 3, v{o}")
        k(f"v_and_b32 v15, 3, v13")
        k(f"v_lshl_add_u32 v{o}, v15, 1, v{o}")
    SC = f2u(18 ** -0.5)
    for j in range(8):
        k(f"s_waitcnt vmcnt({min(63, k.done + 24 + 3*(7-j))})")
        b = KB + 10 * j
        L = 210 + j
        k(f"v_dot2_f32_bf16 v{L}, v{QB}, v{b}, 0")
        for t in range(1, 9):
            k(f"v_dot2_f32_bf16 v{L}, v{QB+t}, v{b+t}, v{L}")
    k("s_nop 3")
    for j in range(0, 8, 2):
        L = 210 + j
        k(f"v_cvt_pk_bf16_f32 v12, v{L}, v{L+1}")
        k(f"v_lshlrev_b32 v{L}, 16, v12")
        k(f"v_and_b32 v{L+1}, 0xffff0000, v12")
        k(f"v_mul_f32 v{L}, {hx(SC)}, v{L}")
        k(f"v_mul_f32 v{L+1}, {hx(SC)}, v{L+1}")
        k(f"v_cvt_pk_bf16_f32 v12, v{L}, v{L+1}")
        k(f"v_lshlrev_b32 v{L}, 16, v12")
        k(f"v_and_b32 v{L+1}, 0xffff0000, v12")
    k(f"v_mov_b32 v13, {hx(f2u(-1e9))}")
    for j in range(1, 8):
        k(f"v_cmp_le_u32 vcc, {2*j}, v2")
        k("s_nop 1")
        k(f"v_cndmask_b32 v{210+j}, v13, v{210+j}, vcc")
    k("v_max3_f32 v12, v210, v211, v212")
    k("v_max3_f32 v12, v12, v213, v214")
    k("v_max3_f32 v12, v12, v215, v216")
    k("v_max_f32 v12, v12, v217")
    LOG2E = f2u(1.4426950408889634)
    for j in range(8):
        k(f"v_sub_f32 v{210+j}, v{210+j}, v12")
        k(f"v_mul_f32 v{210+j}, {hx(LOG2E)}, v{210+j}")
        k(f"v_exp_f32 v{210+j}, v{210+j}")
    k("s_nop 0")
    k("v_add_f32 v12, v210, v211")
    k("v_add_f32 v13, v212, v213")
    k("v_add_f32 v14, v214, v215")
    k("v_add_f32 v15, v216, v217")
    k("v_add_f32 v12, v12, v13")
    k("v_add_f32 v14, v14, v15")
    k("v_add_f32 v12, v12, v14")
    k("v_rcp_f32 v12, v12")
    k("s_nop 0")
    for j in range(8):
        k(f"v_mul_f32 v{210+j}, v{210+j}, v12")
    for j in range(0, 8, 2):
        k(f"v_cvt_pk_bf16_f32 v{220+j//2}, v{210+j}, v{211+j}")
    k("s_mov_b32 s81, 0x05040100")
    k("s_mov_b32 s82, 0x07060302")
    k(f"s_waitcnt vmcnt({k.done})")
    for t in range(9):
        for jp in range(4):
            a = VB + 10 * (2 * jp) + t
            b = VB + 10 * (2 * jp + 1) + t
            k(f"v_perm_b32 v12, v{b}, v{a}, s81")
            k(f"v_perm_b32 v13, v{b}, v{a}, s82")
            c0 = "0" if jp == 0 else f"v{224+2*t}"
            c1 = "0" if jp == 0 else f"v{225+2*t}"
            k(f"v_dot2_f32_bf16 v{224+2*t}, v12, v{220+jp}, {c0}")
            k(f"v_dot2_f32_bf16 v{225+2*t}, v13, v{220+jp}, {c1}")
    k("s_nop 3")
    for t in range(9):
        k(f"v_cvt_pk_bf16_f32 v{224+2*t}, v{224+2*t}, v{225+2*t}")
        k(f"ds_write_b32 v{200+t}, v{224+2*t}")
    k("s_lshr_b32 s84, s2, 3")
    k("s_mul_i32 s84, s84, 162")
    k("s_add_u32 s84, s84, 144")
    k("s_lshl_b32 s84, s84, 12")
    k("s_bfe_u32 s85, s2, 0x20001")
    k("s_lshl_b32 s85, s85, 10")
    k("s_add_u32 s84, s84, s85")
    k("s_and_b32 s85, s2, 1")
    k("s_lshl_b32 s85, s85, 7")
    k("s_add_u32 s84, s84, s85")
    for i in range(3):
        k(f"v_add_u32 v12, {256*i}, {tid}")
        k(f"v_lshlrev_b32 v{200+i}, 4, v12")
        k(f"v_add_u32 v{200+i}, {OST}, v{200+i}")
        k("v_lshrrev_b32 v13, 5, v12")
        k(f"v_lshlrev_b32 v{204+i}, 12, v13")
        k("v_bfe_u32 v13, v12, 3, 2")
        k(f"v_lshl_add_u32 v{204+i}, v13, 8, v{204+i}")
        k("v_and_b32 v13, 7, v12")
        k(f"v_lshl_add_u32 v{204+i}, v13, 4, v{204+i}")
    k.flush()
    k = k0_
    k("s_waitcnt lgkmcnt(0)")
    k("s_barrier")
    for i in range(3):
        k(f"ds_read_b128 v[{224+4*i}:{227+4*i}], v{200+i}")
    k(f"v_cmp_gt_u32 vcc, 64, {tid}")
    k("s_waitcnt lgkmcnt(0)")
    for i in range(3):
        if i == 2:
            k("s_and_saveexec_b64 s[86:87], vcc")
            k(f"s_cbranch_execz L_k2_skip{uid2[0]}")
        k(f"buffer_store_dwordx4 v[{224+4*i}:{227+4*i}], v{204+i}, s[12:15], s84 offen" + (" sc1" if fused else ""))
    k(f"L_k2_skip{uid2[0]}:")
    uid2[0] += 1
    k("s_mov_b64 exec, -1")
    if fused:
        return
    k.label("L_k2_done")
    k("s_endpgm")
    return k.text()


SLOT = 36864
K1_KB = 26
K3_KB = 21
K1_LDS = 4 * SLOT
K1_LDS_ALLOC = 4 * SLOT + 16384


def gen_k1():
    global STAMP
    STAMP = "--stamp1" in sys.argv
    k = K()
    sW, sNq, sNblk, sD, sQoff, sPoff, sIsUp = 28, 29, 30, 31, 32, 33, 34
    sSoff, sStep, sM0, sSlotRd, sSlotDma, sHoOff, sQkvOff = 35, 36, 37, 38, 39, 40, 41
    sCnt, sNp, sT0, sT1, sStepQ, sStepG, sSzQ, sSzG, sWbase = 42, 43, 44, 45, 46, 47, 48, 49, 50
    sXLo, sXHi, sNp2, sXn, sJq, sJg, sQkvOff2 = 51, 52, 53, 54, 55, 56, 57
    vLaneRd, vRdCur, vRdNext, vOffQ, vOffG, vOffD, vHoOff, vQkvOff, vC0, vC1, vXnOff = range(1, 12)
    TMP = 16
    QT = 48
    ACC = [64, 128]
    XNV = 192
    WF = 224
    JF = 16
    vQkvOff2, vQr, vQw = 244, 245, 246

    def xn_reg(rt, ks):
        idx = rt * 36 + ks
        if idx < 64:
            return f"a[{4*idx}:{4*idx+3}]"
        r = XNV + 4 * (idx - 64)
        return f"v[{r}:{r+3}]"

    def wf(s):
        return WF + 4 * (s % 4)

    k("s_cmp_ge_u32 s2, 256")
    k("s_cbranch_scc1 L_k1_done")
    k("s_load_dwordx2 s[4:5], s[0:1], 8")
    k("s_load_dwordx4 s[8:11], s[0:1], 32")
    k("s_load_dwordx2 s[6:7], s[0:1], 72")
    k("s_load_dwordx2 s[64:65], s[0:1], 48")
    k("s_load_dwordx2 s[66:67], s[0:1], 16")
    k("v_lshrrev_b32 v12, 6, v0")
    k("s_nop 0")
    k(f"v_readfirstlane_b32 s{sW}, v12")
    k("v_and_b32 v0, 63, v0")
    k(f"s_and_b32 s{sT0}, s2, 7")
    k(f"s_lshr_b32 s{sT1}, s2, 3")
    k(f"s_lshr_b32 s3, s{sT1}, 2")
    k(f"s_and_b32 s{sT1}, s{sT1}, 3")
    k(f"s_lshl_b32 s{sT0}, s{sT0}, 2")
    k(f"s_add_u32 s{sT0}, s{sT0}, s{sT1}")
    k(f"s_cmp_lt_u32 s{sT0}, 16")
    k("s_cbranch_scc0 L_k1_c1")
    k(f"s_mov_b32 s{sNp}, 5")
    k(f"s_mov_b32 s{sNq}, 1")
    k(f"s_mul_i32 s{sPoff}, s{sT0}, 5")
    k(f"s_mov_b32 s{sQoff}, s{sT0}")
    k("s_branch L_k1_cdone")
    k.label("L_k1_c1")
    k(f"s_mov_b32 s{sNp}, 4")
    k(f"s_sub_u32 s{sT1}, s{sT0}, 16")
    k(f"s_lshl_b32 s{sPoff}, s{sT1}, 2")
    k(f"s_add_u32 s{sPoff}, s{sPoff}, 80")
    k(f"s_cmp_lt_u32 s{sT0}, 22")
    k("s_cbranch_scc0 L_k1_c2")
    k(f"s_mov_b32 s{sNq}, 3")
    k(f"s_mul_i32 s{sQoff}, s{sT1}, 3")
    k(f"s_add_u32 s{sQoff}, s{sQoff}, 16")
    k("s_branch L_k1_cdone")
    k.label("L_k1_c2")
    k(f"s_mov_b32 s{sNq}, 2")
    k(f"s_sub_u32 s{sT1}, s{sT0}, 22")
    k(f"s_lshl_b32 s{sQoff}, s{sT1}, 1")
    k(f"s_add_u32 s{sQoff}, s{sQoff}, 34")
    k.label("L_k1_cdone")
    k(f"s_lshl_b32 s{sNp2}, s{sNp}, 1")
    k(f"s_add_u32 s{sNblk}, s{sNp2}, s{sNq}")
    k(f"s_lshl_b32 s{sT1}, s3, 2")
    k(f"s_add_u32 s{sT1}, s{sT1}, s{sW}")
    k(f"s_mul_i32 s{sHoOff}, s{sT1}, 162")
    k(f"s_add_u32 s{sHoOff}, s{sHoOff}, s{sPoff}")
    k(f"s_lshl_b32 s{sHoOff}, s{sHoOff}, 12")
    k(f"s_mul_i32 s{sQkvOff}, s{sT1}, {64*3456}")
    k(f"s_lshl_b32 s{sQoff}, s{sQoff}, 6")
    k(f"s_lshl_b32 s{sPoff}, s{sPoff}, 6")
    k(f"s_add_u32 s{sQkvOff}, s{sQkvOff}, s{sQoff}")
    k(f"s_add_u32 s{sQkvOff2}, s{sQkvOff}, {32*3456}")
    k(f"s_mul_i32 s{sXn}, s{sT1}, {2*36864}")
    k(f"s_mov_b32 s{sJq}, s{sQoff}")
    k(f"s_mov_b32 s{sJg}, s{sPoff}")
    k(f"s_mov_b32 s{sD}, 3")
    k(f"s_mov_b32 s{sIsUp}, 0")
    k(f"s_add_u32 s{sQoff}, s{sQoff}, 64")
    k(f"s_add_u32 s{sPoff}, s{sPoff}, 64")
    k(f"s_mov_b32 s{sStepQ}, {64*3456}")
    k(f"s_mov_b32 s{sStepG}, {64*9216}")
    k(f"s_mov_b32 s{sSzQ}, {576*3456}")
    k(f"s_mov_b32 s{sSzG}, {576*9216}")
    k(f"s_lshl_b32 s{sWbase}, s{sW}, 10")
    k(f"s_mov_b32 s{sSlotDma}, {3*SLOT}")
    k(f"s_mov_b32 s{sSlotRd}, {3*SLOT}")
    k("v_lshrrev_b32 v12, 2, v0")
    k(f"s_lshl_b32 s{sT0}, s{sW}, 4")
    k(f"v_add_u32 v12, s{sT0}, v12")
    k("v_and_b32 v13, 3, v0")
    k("v_lshlrev_b32 v13, 4, v13")
    k(f"s_movk_i32 s{sT0}, 3456")
    k(f"v_mad_u32_u24 v{vOffQ}, v12, s{sT0}, v13")
    k(f"s_movk_i32 s{sT0}, 9216")
    k(f"v_mad_u32_u24 v{vOffG}, v12, s{sT0}, v13")
    k("v_lshrrev_b32 v12, 5, v0")
    k(f"v_lshlrev_b32 v{vLaneRd}, 9, v12")
    k("v_bfe_u32 v12, v0, 2, 2")
    k(f"v_lshl_add_u32 v{vLaneRd}, v12, 6, v{vLaneRd}")
    k("v_bfe_u32 v12, v0, 4, 1")
    k(f"v_lshl_add_u32 v{vLaneRd}, v12, 5, v{vLaneRd}")
    k("v_and_b32 v12, 3, v0")
    k(f"v_lshl_add_u32 v{vLaneRd}, v12, 3, v{vLaneRd}")
    k(f"v_add_u32 v{vRdCur}, {SLOT}, v{vLaneRd}")
    k(f"v_add_u32 v{vOffD}, {2*SLOT}, v{vLaneRd}")
    k(f"v_add_u32 v{vRdNext}, {3*SLOT}, v{vLaneRd}")
    k("v_bfe_u32 v12, v0, 4, 1")
    k(f"v_lshlrev_b32 v{vHoOff}, 10, v12")
    k("v_lshrrev_b32 v12, 5, v0")
    k(f"v_lshl_add_u32 v{vHoOff}, v12, 8, v{vHoOff}")
    k("v_and_b32 v12, 15, v0")
    k(f"v_lshl_add_u32 v{vHoOff}, v12, 4, v{vHoOff}")
    k("v_lshrrev_b32 v12, 2, v0")
    k(f"v_mul_u32_u24 v{vQkvOff}, 3456, v12")
    k("v_and_b32 v13, 3, v0")
    k(f"v_lshl_add_u32 v{vQkvOff}, v13, 4, v{vQkvOff}")
    k(f"v_add_u32 v{vQkvOff2}, {16*3456}, v{vQkvOff}")
    k(f"s_lshl_b32 s{sT0}, s{sW}, 12")
    k(f"s_add_u32 s{sT0}, s{sT0}, {4*SLOT}")
    k("v_bfe_u32 v14, v12, 2, 2")
    k("v_xor_b32 v13, v13, v14")
    k("v_lshlrev_b32 v13, 4, v13")
    k(f"v_lshl_add_u32 v{vQr}, v12, 6, v13")
    k(f"v_add_u32 v{vQr}, s{sT0}, v{vQr}")
    k("v_and_b32 v12, 31, v0")
    k("v_bfe_u32 v14, v12, 2, 2")
    k("v_lshrrev_b32 v13, 5, v0")
    k("v_lshlrev_b32 v13, 3, v13")
    k("v_lshl_add_u32 v13, v12, 6, v13")
    k(f"v_add_u32 v13, s{sT0}, v13")
    for g in range(4):
        k(f"v_xor_b32 v15, {g}, v14")
        k(f"v_lshl_add_u32 v{vQw+g}, v15, 4, v13")
    k(f"v_lshlrev_b32 v{vXnOff}, 4, v0")
    code_prefetch(k, "k1_gemm1_kernel", K1_KB, sW, vXnOff, 84)
    c = 0.7978845608028654
    L2E = 1.4426950408889634
    k(f"v_mov_b32 v{vC0}, {hx(f2u(-2*c*L2E))}")
    k(f"v_mov_b32 v{vC1}, {hx(f2u(-2*c*0.044715*L2E))}")
    k("s_waitcnt lgkmcnt(0)")
    srd(k, 12, 6, 7, XN_SIZE, XN_OFF)
    srd(k, 16, 6, 7, QKV_SIZE, QKV_OFF)
    srd(k, 20, 6, 7, HO_SIZE, HO_OFF)
    k("s_and_b32 s5, s5, 0xffff")
    k("s_and_b32 s9, s9, 0xffff")
    k("s_and_b32 s11, s11, 0xffff")
    srd(k, 24, 8, 9, 576 * 9216)
    srd(k, 80, 4, 5, 576 * 3456)
    srd(k, 84, 8, 9, 576 * 9216)
    srd(k, 88, 10, 11, 576 * 9216)
    srd(k, 68, 64, 65, F * D * 2)
    srd(k, 72, 66, 67, D * D * 2)
    k("s_lshl_b32 s76, s2, 2")
    k(f"s_add_u32 s76, s76, s{sW}")
    k("s_lshl_b32 s77, s76, 10")
    k("s_mul_i32 s76, s76, 6144")
    stamp_init(k, 6, 7, sW)
    stamp(k, 250)

    def dma_setup():
        o = []
        o.append(f"s_cmp_eq_u32 s{sIsUp}, 0")
        o.append(f"s_cselect_b32 s{sXLo}, s8, s10")
        o.append(f"s_cselect_b32 s{sXHi}, s9, s11")
        o.append(f"s_sub_u32 s{sT0}, s{sD}, 1")
        o.append(f"s_cmp_ge_u32 s{sT0}, s{sNp2}")
        o.append(f"s_cselect_b32 s24, s4, s{sXLo}")
        o.append(f"s_cselect_b32 s25, s5, s{sXHi}")
        o.append(f"s_cselect_b32 s26, s{sSzQ}, s{sSzG}")
        o.append(f"s_cselect_b32 s{sSoff}, s{sQoff}, s{sPoff}")
        o.append(f"s_cselect_b32 s{sStep}, s{sStepQ}, s{sStepG}")
        o.append(f"s_cselect_b64 vcc, -1, 0")
        o.append(f"s_cselect_b32 s{sT0}, 64, 0")
        o.append(f"s_cselect_b32 s{sXLo}, 0, 1")
        o.append(f"v_cndmask_b32 v{vOffD}, v{vOffG}, v{vOffQ}, vcc")
        o.append(f"s_add_u32 s{sQoff}, s{sQoff}, s{sT0}")
        o.append(f"s_lshl_b32 s{sT0}, s{sIsUp}, 6")
        o.append(f"s_add_u32 s{sPoff}, s{sPoff}, s{sT0}")
        o.append(f"s_xor_b32 s{sIsUp}, s{sIsUp}, s{sXLo}")
        o.append(f"s_cmp_lt_u32 s{sD}, s{sNblk}")
        o.append(f"s_cselect_b32 s26, s26, 0")
        o.append(f"s_add_u32 s{sD}, s{sD}, 1")
        o.append(f"s_add_u32 s{sM0}, s{sSlotDma}, s{sWbase}")
        o.append(f"s_add_u32 s{sSlotDma}, s{sSlotDma}, {SLOT}")
        o.append(f"s_cmp_lt_u32 s{sSlotDma}, {K1_LDS}")
        o.append(f"s_cselect_b32 s{sSlotDma}, s{sSlotDma}, 0")
        return o

    def dma_one():
        return [f"s_mov_b32 m0, s{sM0}",
                f"s_add_u32 s{sM0}, s{sM0}, 4096",
                f"buffer_load_dwordx4 v{vOffD}, s[24:27], s{sSoff} offen lds",
                f"s_add_u32 s{sSoff}, s{sSoff}, s{sStep}"]

    def xn_load(rt, ks):
        off = rt * 36864 + ks * 1024
        return [f"s_add_u32 s{sCnt}, s{sXn}, {off}",
                f"buffer_load_dwordx4 {xn_reg(rt, ks)}, v{vXnOff}, s[12:15], s{sCnt} offen"]

    def tr_read(step, part, nxt):
        r = wf(step) + 2 * part
        a = vRdNext if nxt else vRdCur
        return f"ds_read_b64_tr_b16 v[{r}:{r+1}], v{a} offset:{(step % 36) * 1024 + part * 256}"

    vm = []

    def emit_vm(instrs, tag):
        for i in instrs:
            k(i)
        vm.append(tag)

    def vm_wait(tag):
        idx = max(i for i, t in enumerate(vm) if t == tag)
        return min(len(vm) - 1 - idx, 63)

    def j_group_ops(g):
        ops = []
        for b, (sr, so, vo, stp) in enumerate([(80, sJq, vOffQ, sStepQ), (84, sJg, vOffG, None), (88, sJg, vOffG, sStepG)]):
            ins = [f"s_add_u32 s{sT0}, s{sWbase}, {b*SLOT + g*4096}",
                   f"s_mov_b32 m0, s{sT0}",
                   "s_nop 0",
                   f"buffer_load_dwordx4 v{vo}, s[{sr}:{sr+3}], s{so} offen lds"]
            if stp is not None:
                ins.append(f"s_add_u32 s{so}, s{so}, s{stp}")
            ops.append((ins, f"g{g}"))
        for ks in range(4 * g, 4 * g + 4):
            for rt in range(2):
                ops.append((xn_load(rt, ks), f"x{ks}"))
        return ops

    JPRE = 2

    def blk_chunk(sr, slot, g):
        return [f"s_add_u32 s{sT0}, s{sWbase}, {slot*SLOT + g*4096}",
                f"s_mov_b32 m0, s{sT0}",
                f"s_add_u32 s{sT1}, s{sPoff}, {g*64*9216}",
                f"buffer_load_dwordx4 v{vOffG}, s[{sr}:{sr+3}], s{sT1} offen lds"]

    WFIRST = "--wfirst" in sys.argv

    def j_all_ops(g, only=None):
        ops = j_group_ops(g) + [(blk_chunk(84, 3, g), "d3")]
        if only == "w":
            ops = [o for o in ops if not o[1].startswith("x")]
        if only == "x":
            ops = [o for o in ops if o[1].startswith("x")]
        return ops

    if WFIRST:
        for ins, tag in j_all_ops(0):
            emit_vm(ins, tag)
        for g in range(1, 9):
            for ins, tag in j_all_ops(g, "w"):
                emit_vm(ins, tag)
        for ins, tag in j_all_ops(1, "x"):
            emit_vm(ins, tag)
    else:
        for g in range(JPRE):
            for ins, tag in j_all_ops(g):
                emit_vm(ins, tag)
    jbase = [vLaneRd, vRdCur, vOffD]
    jacc = [ACC[1], ACC[0], ACC[0] + 32]

    def j_read(step, b, part):
        r = JF + 12 * (step & 1) + 4 * b + 2 * part
        return f"ds_read_b64_tr_b16 v[{r}:{r+1}], v{jbase[b]} offset:{step*1024 + part*256}"

    k(f"s_waitcnt vmcnt({vm_wait('g0')})")
    k("s_barrier")
    stamp(k, 250)
    for b in range(3):
        for part in range(2):
            k(j_read(0, b, part))
    pend = []
    for s in range(36):
        g = s // 4
        if s % 4 == 0 and g + JPRE < 9:
            pend += j_all_ops(g + JPRE, "x" if WFIRST else None)
        if s % 4 == 0 and g >= 2:
            pend.append((blk_chunk(88, 0, g - 2), "d4"))
        k(f"s_waitcnt vmcnt({vm_wait('x%d' % s)})")
        if (s + 1) % 4 == 0 and s + 1 < 36:
            k(f"s_waitcnt vmcnt({vm_wait('g%d' % ((s + 1) // 4))})")
            k("s_barrier")
        if s == 33:
            k(f"s_waitcnt vmcnt({vm_wait('d3')})")
            k("s_barrier")
        k("s_waitcnt lgkmcnt(0)")
        n = 0
        for b in range(3):
            for rt in range(2):
                a = jacc[b] + 16 * rt
                cin = "0" if s == 0 else f"v[{a}:{a+15}]"
                r = JF + 12 * (s & 1) + 4 * b
                k(f"v_mfma_f32_32x32x16_bf16 v[{a}:{a+15}], v[{r}:{r+3}], {xn_reg(rt, s)}, {cin}")
                if s + 1 < 36:
                    k(j_read(s + 1, b, rt))
                if s >= 33 and b == 0:
                    k(tr_read(s - 33, rt, True))
                if pend and n < 4:
                    ins, tag = pend.pop(0)
                    emit_vm(ins, tag)
                n += 1
    assert not pend
    k(f"v_mov_b32 v{vRdCur}, v{vRdNext}")
    k("s_barrier")
    for g in (7, 8):
        for i in blk_chunk(88, 0, g):
            k(i)
    k(f"s_mov_b32 s{sIsUp}, 0")
    k(f"s_mov_b32 s{sD}, 5")
    k(f"s_add_u32 s{sPoff}, s{sPoff}, 64")
    k(f"s_mov_b32 s{sSlotDma}, {SLOT}")
    stamp(k, 250)

    def rdnext_update():
        return [f"s_add_u32 s{sSlotRd}, s{sSlotRd}, {SLOT}",
                f"s_cmp_lt_u32 s{sSlotRd}, {K1_LDS}",
                f"s_cselect_b32 s{sSlotRd}, s{sSlotRd}, 0",
                f"v_add_u32 v{vRdNext}, s{sSlotRd}, v{vLaneRd}"]

    def block_body(acc, fillers, late=None, prev_tail=0):
        own = []
        st = dma_setup()
        for i in range(0, len(st), 4):
            own.append((i // 4, st[i:i + 4]))
        for i in range(9):
            own.append((8 + 5 * i, dma_one()))
        lt = list(late or [])
        g = 50
        while lt:
            own.append((g, lt[:2]))
            lt = lt[2:]
            g += 1
        assert g <= 64
        own.append((64, rdnext_update()))
        q = list(fillers)
        per_gap = (len(q) + 57) // 58 if q else 0
        local_vm = 0
        tail = 0
        gap = 0

        def cnt(ins):
            nonlocal local_vm, tail
            if ins.startswith("buffer_"):
                local_vm += 1
                tail = 0 if ins.endswith("lds") else tail + 1
        for s in range(36):
            if s == 33:
                k(f"s_waitcnt vmcnt({min(63, local_vm + prev_tail)})")
                k("s_barrier")
            k("s_waitcnt lgkmcnt(4)")
            for rt in range(2):
                a = acc + 16 * rt
                cin = "0" if s == 0 else f"v[{a}:{a+15}]"
                k(f"v_mfma_f32_32x32x16_bf16 v[{a}:{a+15}], v[{wf(s)}:{wf(s)+3}], {xn_reg(rt, s)}, {cin}")
                k(tr_read(s + 3, rt, s + 3 >= 36))
                while own and own[0][0] <= gap:
                    for ins in own.pop(0)[1]:
                        k(ins)
                        cnt(ins)
                if gap >= 6:
                    for _ in range(per_gap):
                        if q:
                            ins = q.pop(0)
                            k(ins)
                            cnt(ins)
                gap += 1
        assert not q and not own, (len(q), len(own))
        k(f"v_mov_b32 v{vRdCur}, v{vRdNext}")
        stamp(k, 250)
        return tail

    def q_convert(acc):
        k("s_nop 7")
        k("s_nop 7")
        for rt in range(2):
            for g in range(4):
                a = acc + 16 * rt + 4 * g
                t = QT + 8 * rt + 2 * g
                k(f"v_cvt_pk_bf16_f32 v{t}, v{a}, v{a+1}")
                k(f"v_cvt_pk_bf16_f32 v{t+1}, v{a+2}, v{a+3}")
                k(f"ds_write_b64 v{vQw+g}, v[{t}:{t+1}] offset:{rt*2048}")
        k("s_waitcnt lgkmcnt(0)")
        for i in range(4):
            k(f"ds_read_b128 v[{QT+4*i}:{QT+4*i+3}], v{vQr} offset:{i*1024}")
        k("s_waitcnt lgkmcnt(0)")

    def q_stores(pad=0):
        o = []
        for i in range(4):
            so = sQkvOff if i < 2 else sQkvOff2
            o.append(f"buffer_store_dwordx4 v[{QT+4*i}:{QT+4*i+3}], v{vQkvOff+0}, s[16:19], s{so} offen" if i % 2 == 0 else
                     f"buffer_store_dwordx4 v[{QT+4*i}:{QT+4*i+3}], v{vQkvOff2}, s[16:19], s{so} offen")
            o += ["s_nop 0"] * pad
        o.append(f"s_add_u32 s{sQkvOff}, s{sQkvOff}, 64")
        o.append(f"s_add_u32 s{sQkvOff2}, s{sQkvOff2}, 64")
        return o

    def p_epilogue_instrs(accset):
        o = []
        for rt in range(2):
            for p in range(2):
                pk = TMP + 24 + 4 * ((rt * 2 + p) % 2)
                for pr in range(4):
                    g0 = accset + 16 * rt + 8 * p + 2 * pr
                    u0 = g0 + 32
                    t = TMP + 8 * (pr % 2)
                    if MIMIC:
                        o.append(f"v_cvt_pk_bf16_f32 v{t+6}, v{g0}, v{g0+1}")
                        o.append(f"v_cvt_pk_bf16_f32 v{t+7}, v{u0}, v{u0+1}")
                        o.append(f"v_lshlrev_b32 v{t+4}, 16, v{t+6}")
                        o.append(f"v_and_b32 v{t+5}, 0xffff0000, v{t+6}")
                        G0, G1 = t + 4, t + 5
                    else:
                        G0, G1 = g0, g0 + 1
                    o.append(f"v_mul_f32 v{t}, v{G0}, v{G0}")
                    o.append(f"v_mul_f32 v{t+1}, v{G1}, v{G1}")
                    o.append(f"v_fma_f32 v{t}, v{t}, v{vC1}, v{vC0}")
                    o.append(f"v_fma_f32 v{t+1}, v{t+1}, v{vC1}, v{vC0}")
                    o.append(f"v_mul_f32 v{t}, v{t}, v{G0}")
                    o.append(f"v_mul_f32 v{t+1}, v{t+1}, v{G1}")
                    o.append(f"v_exp_f32 v{t}, v{t}")
                    o.append(f"v_exp_f32 v{t+1}, v{t+1}")
                    if MIMIC:
                        o.append(f"v_lshlrev_b32 v{t+2}, 16, v{t+7}")
                    else:
                        o.append("s_nop 0")
                    o.append(f"v_add_f32 v{t}, 1.0, v{t}")
                    o.append(f"v_add_f32 v{t+1}, 1.0, v{t+1}")
                    o.append(f"v_rcp_f32 v{t}, v{t}")
                    o.append(f"v_rcp_f32 v{t+1}, v{t+1}")
                    if MIMIC:
                        o.append(f"v_and_b32 v{t+3}, 0xffff0000, v{t+7}")
                    else:
                        o.append("s_nop 0")
                    o.append(f"v_mul_f32 v{t}, v{t}, v{G0}")
                    o.append(f"v_mul_f32 v{t+1}, v{t+1}, v{G1}")
                    if MIMIC:
                        o.append(f"v_cvt_pk_bf16_f32 v{t+6}, v{t}, v{t+1}")
                        o.append(f"v_lshlrev_b32 v{t}, 16, v{t+6}")
                        o.append(f"v_and_b32 v{t+1}, 0xffff0000, v{t+6}")
                        o.append(f"v_mul_f32 v{t}, v{t}, v{t+2}")
                        o.append(f"v_mul_f32 v{t+1}, v{t+1}, v{t+3}")
                    else:
                        o.append(f"v_mul_f32 v{t}, v{t}, v{u0}")
                        o.append(f"v_mul_f32 v{t+1}, v{t+1}, v{u0+1}")
                    o.append(f"v_cvt_pk_bf16_f32 v{pk+pr}, v{t}, v{t+1}")
                o.append(f"buffer_store_dwordx4 v[{pk}:{pk+3}], v{vHoOff}, s[20:23], s{sHoOff} offen offset:{rt*2048 + p*512}{SC}")
        o.append(f"s_add_u32 s{sHoOff}, s{sHoOff}, 4096")
        return o

    def merge(a, b):
        out = []
        step = max(1, len(a) // (len(b) + 1))
        bi = 0
        for i, x in enumerate(a):
            out.append(x)
            if (i + 1) % step == 0 and bi < len(b):
                out.append(b[bi]); bi += 1
        out += b[bi:]
        return out

    def pair_body(accset, epi, late1=None, prev_tail=0):
        h = len(epi) // 2
        t0 = block_body(accset, epi[:h], None, prev_tail)
        return block_body(accset + 32, epi[h:], late1, t0)

    q_convert(ACC[1])
    srd(k, 60, 6, 7, QKV_SIZE, QKV_OFF)
    k("s_mov_b32 s58, 64")
    pf = []
    for i in range(6):
        if i % 4 == 0 and i:
            pf.append("s_add_u32 s76, s76, 4096")
        pf.append(f"buffer_load_dwordx4 v[240:243], v{vXnOff}, s[68:71], s76 offen offset:{1024*(i%4)}")
    pf.append(f"buffer_load_dwordx4 v[240:243], v{vXnOff}, s[72:75], s77 offen")
    pf += ["s_mov_b32 s70, 0", "s_mov_b32 s74, 0"]
    qs = [x.replace("s[16:19]", "s[60:63]").replace(", 64", ", s58") for x in q_stores()]
    qs += ["s_mov_b32 s62, 0", "s_mov_b32 s58, 0"]
    k(f"s_mov_b32 s{sCnt}, 1")
    k.label("L_k1_ploop")
    tB = pair_body(ACC[1], p_epilogue_instrs(ACC[0]), qs + pf)
    k(f"s_add_u32 s{sCnt}, s{sCnt}, 1")
    k(f"s_cmp_ge_u32 s{sCnt}, s{sNp}")
    k("s_cbranch_scc1 L_k1_endB")
    if "--wb" in sys.argv:
        k("s_cmp_lt_u32 s2, 8")
        k("s_cbranch_scc0 L_k1_nowb")
        k(f"s_cmp_eq_u32 s{sW}, 0")
        k("s_cbranch_scc0 L_k1_nowb")
        k("buffer_wbl2 sc1")
        k.label("L_k1_nowb")
    pair_body(ACC[0], p_epilogue_instrs(ACC[1]), None, tB)
    k(f"s_add_u32 s{sCnt}, s{sCnt}, 1")
    k(f"s_cmp_ge_u32 s{sCnt}, s{sNp}")
    k("s_cbranch_scc0 L_k1_ploop")
    k("s_nop 7")
    k("s_nop 7")
    for i in p_epilogue_instrs(ACC[0]):
        k(i)
    k("s_branch L_k1_qtail")
    k.label("L_k1_endB")
    k("s_nop 7")
    k("s_nop 7")
    for i in p_epilogue_instrs(ACC[1]):
        k(i)
    k.label("L_k1_qtail")
    stamp(k, 250)
    k(f"s_cmp_lt_u32 s{sNq}, 2")
    k("s_cbranch_scc1 L_k1_fin")
    block_body(ACC[0], [])
    q_convert(ACC[0])
    k(f"s_cmp_lt_u32 s{sNq}, 3")
    k("s_cbranch_scc1 L_k1_qst")
    block_body(ACC[0], q_stores(6))
    q_convert(ACC[0])
    k.label("L_k1_qst")
    for i in q_stores():
        k(i)
    k.label("L_k1_fin")
    stamp(k, 250)
    stamp_rt(k, 250)
    k.label("L_k1_done")
    k("s_endpgm")
    return k.text()


K3_R = 8
K3_PF = 6
K3_LDS = 131072 + 9216 + 4096
K3_GRID = 240


def gen_k3():
    global STAMP
    STAMP = "--stamp3" in sys.argv
    k = K()
    sW, sRb, sNt, sS0, sNY, sNS, sT0, sT1 = 28, 29, 30, 31, 32, 33, 35, 36
    sWoff, sM0b, sLd, sLim = 38, 39, 40, 41
    sH = 60
    vRd = 242
    vH, vX, vDma = 246, 247, 248
    ACCY, ACCS, WFR, TMP = 16, 96, 176, 216

    k("s_cmp_ge_u32 s2, 256")
    k("s_cbranch_scc1 L_k3_done")
    k("s_load_dwordx2 s[70:71], s[0:1], 72")
    k("v_mov_b32 v255, v0")
    k(f"s_cmp_ge_u32 s2, {K3_GRID}")
    k("s_cbranch_scc1 L_k3_attn_only")
    k("s_and_b32 s3, s2, 7")
    k("s_mul_i32 s3, s3, 30")
    k(f"s_lshr_b32 s{sT1}, s2, 3")
    k(f"s_add_u32 s3, s3, s{sT1}")
    k("s_cmp_ge_u32 s3, 234")
    k("s_cbranch_scc1 L_k3_attn_only")
    k("s_load_dwordx2 s[4:5], s[0:1], 0")
    k("s_load_dwordx2 s[6:7], s[0:1], 16")
    k("s_load_dwordx4 s[8:11], s[0:1], 48")
    k("s_load_dwordx2 s[12:13], s[0:1], 72")
    k("v_lshrrev_b32 v13, 6, v0")
    k("s_nop 0")
    k(f"v_readfirstlane_b32 s{sW}, v13")
    k("v_and_b32 v0, 63, v0")
    k(f"s_mul_hi_u32 s{sRb}, s3, {(1 << 32) // 9 + 1}")
    k(f"s_mul_i32 s{sT0}, s{sRb}, 9")
    k(f"s_sub_u32 s{sNt}, s3, s{sT0}")
    k(f"s_mul_i32 s{sS0}, s{sW}, 40")
    k(f"s_min_u32 s{sT0}, s{sW}, 2")
    k(f"s_add_u32 s{sS0}, s{sS0}, s{sT0}")
    k(f"s_cmp_lt_u32 s{sW}, 2")
    k(f"s_cselect_b32 s{sNY}, 41, 40")
    k(f"s_cmp_eq_u32 s{sW}, 3")
    k(f"s_cselect_b32 s{sNY}, 22, s{sNY}")
    k(f"s_cselect_b32 s{sNS}, 18, 0")
    k("v_lshrrev_b32 v13, 3, v0")
    k("v_bfe_u32 v14, v0, 1, 2")
    k("v_bfe_u32 v15, v0, 4, 2")
    k("v_xor_b32 v14, v14, v15")
    k("v_lshlrev_b32 v14, 5, v14")
    k("v_and_b32 v15, 1, v0")
    k("v_lshl_add_u32 v14, v15, 4, v14")
    k("v_mul_u32_u24 v13, 1152, v13")
    k("v_add_u32 v13, v13, v14")
    k(f"s_lshl_b32 s{sT0}, s{sNt}, 7")
    k(f"v_add_u32 v{vDma}, s{sT0}, v13")
    k("v_lshrrev_b32 v13, 5, v0")
    k("v_lshlrev_b32 v13, 4, v13")
    k("v_bfe_u32 v14, v0, 4, 1")
    k("v_lshl_add_u32 v13, v14, 2, v13")
    k("v_bfe_u32 v14, v0, 2, 2")
    k("v_add_u32 v13, v13, v14")
    k("v_bfe_u32 v14, v13, 1, 2")
    k("v_lshlrev_b32 v13, 7, v13")
    k("v_and_b32 v15, 3, v0")
    k("v_lshl_add_u32 v13, v15, 3, v13")
    k(f"s_mul_i32 s{sM0b}, s{sW}, {K3_R*4096}")
    k(f"v_add_u32 v13, s{sM0b}, v13")
    for ct in range(4):
        k(f"v_xor_b32 v15, {ct}, v14")
        k(f"v_lshl_add_u32 v{vRd+ct}, v15, 5, v13")
    k(f"v_lshlrev_b32 v{vH}, 4, v0")
    code_prefetch(k, "k3_gemm2_kernel", K3_KB, sW, vH, 44)
    k("s_waitcnt lgkmcnt(0)")
    srd(k, 16, 12, 13, HO_SIZE, HO_OFF)
    srd(k, 20, 8, 9, F * D * 2)
    srd(k, 24, 6, 7, D * D * 2)
    srd(k, 44, 4, 5, XN_SIZE)
    srd(k, 48, 10, 11, XN_SIZE)
    srd(k, 52, 8, 9, F * D * 2)
    srd(k, 72, 70, 71, FLAG_SIZE, FLAG_OFF)
    stamp_init(k, 12, 13, sW)
    stamp(k, 252)
    for i in range(5):
        k(f"s_mul_i32 s{sT0}, s{sRb}, 5")
        k(f"s_add_u32 s{sT0}, s{sT0}, {i}")
        k(f"s_lshr_b32 s{sT1}, s{sT0}, 2")
        k(f"s_mul_i32 s{sT1}, s{sT1}, 162")
        k(f"s_add_u32 s{sT1}, s{sT1}, s{sS0}")
        k(f"s_lshl_b32 s{sT1}, s{sT1}, 12")
        k(f"s_and_b32 s{sT0}, s{sT0}, 3")
        k(f"s_lshl_b32 s{sT0}, s{sT0}, 10")
        k(f"s_add_u32 s{sH+i}, s{sT1}, s{sT0}")
    k(f"s_cmp_eq_u32 s{sRb}, 25")
    k("s_cselect_b32 s79, 24, 40")
    k("v_cmp_gt_u32 vcc, s79, v0")
    k("v_cndmask_b32 v251, 0, v0, vcc")
    k(f"s_mul_i32 s{sT0}, s{sRb}, 160")
    k("v_lshlrev_b32 v251, 2, v251")
    k(f"v_add_u32 v251, s{sT0}, v251")
    k("v_mov_b32 v250, 0")
    k(f"s_lshl_b32 s{sT0}, s2, 2")
    k(f"s_add_u32 s{sT0}, s{sT0}, s{sW}")
    k(f"s_lshl_b32 s{sT0}, s{sT0}, 2")
    k(f"v_mov_b32 v249, s{sT0}")
    k("v_mov_b32 v254, 1")
    k(f"s_add_u32 s83, s{sS0}, {K3_PF + 5}")
    k(f"s_mul_i32 s{sWoff}, s{sS0}, {32*1152}")
    k(f"s_mov_b32 s{sLd}, s{sS0}")
    k(f"s_add_u32 s{sLim}, s{sS0}, s{sNY}")
    k(f"s_add_u32 s{sLim}, s{sLim}, s{sNS}")

    uid = [0]

    def issue_list(st, poll=False):
        g = []
        pre = []
        if poll:
            u = uid[0]; uid[0] += 1
            pre += [f"s_cmp_lg_u32 s{sLd}, s83",
                    f"s_cbranch_scc1 L_k3_p0_{u}",
                    "s_mov_b64 exec, 1",
                    "buffer_store_dword v254, v249, s[72:75], 0 offen sc1",
                    "s_mov_b64 exec, -1",
                    f"L_k3_p0_{u}:",
                    f"s_cmp_lg_u32 s{sLd}, 136",
                    f"s_cbranch_scc1 L_k3_p1_{u}",
                    "buffer_load_dword v250, v251, s[72:75], 0 offen sc1",
                    f"L_k3_p1_{u}:",
                    f"s_cmp_lg_u32 s{sLd}, 144",
                    f"s_cbranch_scc1 L_k3_p2_{u}",
                    f"L_k3_sp_{u}:",
                    "v_cmp_ne_u32 vcc, 1, v250",
                    "s_nop 3",
                    "s_cmp_eq_u64 vcc, 0",
                    f"s_cbranch_scc1 L_k3_p2_{u}",
                    "s_sleep 8",
                    "buffer_load_dword v250, v251, s[72:75], 0 offen sc1",
                    "s_waitcnt vmcnt(0)",
                    f"s_branch L_k3_sp_{u}",
                    f"L_k3_p2_{u}:"]
        pre += [f"s_cmp_eq_u32 s{sLd}, 144",
               "s_cselect_b32 s52, s24, s52",
               "s_cselect_b32 s53, s25, s53",
               "s_cselect_b32 s54, s26, s54",
               f"s_cselect_b32 s{sWoff}, 0, s{sWoff}",
               f"s_cmp_lt_u32 s{sLd}, s{sLim}",
               "s_cselect_b32 s54, s54, 0",
               "s_cselect_b32 s18, s18, 0",
               f"s_add_u32 s{sLd}, s{sLd}, 1"]
        for i in range(4):
            o = list(pre) if i == 0 else []
            o += [f"s_add_u32 s{sT0}, s{sM0b}, {st*4096 + i*1024}",
                  f"s_mov_b32 m0, s{sT0}",
                  f"s_add_u32 s{sT1}, s{sWoff}, {i*8*1152}",
                  f"buffer_load_dwordx4 v{vDma}, s[52:55], s{sT1} offen lds"]
            g.append(o)
        for j in range(5):
            r = 20 * st + 4 * j
            o = [f"buffer_load_dwordx4 a[{r}:{r+3}], v{vH}, s[16:19], s{sH+j} offen{HSC}",
                 f"s_add_u32 s{sH+j}, s{sH+j}, 4096"]
            if j == 4:
                o.append(f"s_add_u32 s{sWoff}, s{sWoff}, {32*1152}")
            g.append(o)
        return g

    def tr_reads(st, par):
        for ct in range(4):
            r = WFR + 16 * par + 4 * ct
            for part in range(2):
                k(f"ds_read_b64_tr_b16 v[{r+2*part}:{r+2*part+1}], v{vRd+ct} offset:{st*4096 + part*1024}")

    pg = []
    for st in range(K3_PF):
        pg += issue_list(st)
    gen_k2(k, pg)
    stamp(k, 252)
    for r in range(ACCY, ACCY + 160):
        k(f"v_mov_b32 v{r}, 0")
    k(f"s_waitcnt vmcnt({9*(K3_PF-1)})")
    tr_reads(0, 0)

    def step_body(st, acc):
        par = st & 1
        k(f"s_waitcnt vmcnt({9*(K3_PF-2)})")
        tr_reads((st + 1) % K3_R, par ^ 1)
        groups = issue_list((st + K3_PF) % K3_R, poll=(acc == ACCY))
        n = 0
        for ct in range(4):
            k(f"s_waitcnt lgkmcnt({8 + 6 - 2*ct})")
            r = WFR + 16 * par + 4 * ct
            for mt in range(5):
                a = acc + 4 * (mt * 4 + ct)
                h = 20 * st + 4 * mt
                k(f"v_mfma_f32_16x16x32_bf16 v[{a}:{a+3}], v[{r}:{r+3}], a[{h}:{h+3}], v[{a}:{a+3}]")
                if n % 2 == 1 and groups:
                    for i in groups.pop(0):
                        k(i)
                n += 1
        assert not groups

    def emit_loop(tag, acc, cnt, exits):
        for st in range(K3_R):
            k.label(f"L_k3_{tag}{st}")
            k(f"s_cmp_eq_u32 s{cnt}, 0")
            k(f"s_cbranch_scc1 {exits[st]}")
            k(f"s_sub_u32 s{cnt}, s{cnt}, 1")
            if st == 0:
                stamp(k, 252)
            step_body(st, acc)
        k(f"s_branch L_k3_{tag}0")

    emit_loop("y", ACCY, sNY, [f"L_k3_s{st}" for st in range(K3_R)])
    emit_loop("s", ACCS, sNS, ["L_k3_red"] * K3_R)
    k.label("L_k3_red")
    stamp(k, 252)
    k("s_waitcnt vmcnt(0) lgkmcnt(0)")
    k("s_barrier")
    k(f"v_lshlrev_b32 v{TMP}, 4, v0")
    k(f"s_mul_i32 s{sT0}, s{sW}, {20*1024}")
    k(f"v_add_u32 v{TMP+1}, s{sT0}, v{TMP}")
    k("s_nop 7")
    for f in range(20):
        a = ACCY + 4 * f
        k(f"ds_write_b128 v{TMP+1}, v[{a}:{a+3}] offset:{f*1024}")
    k(f"s_cmp_eq_u32 s{sW}, 3")
    k("s_cbranch_scc0 L_k3_nos")
    k(f"v_add_u32 v{TMP+2}, {80*1024}, v{TMP}")
    for f in range(20):
        a = ACCS + 4 * f
        k(f"ds_write_b128 v{TMP+2}, v[{a}:{a+3}] offset:{f*1024}")
    k.label("L_k3_nos")
    k(f"s_mul_i32 s{sT0}, s{sRb}, 80")
    k("v_and_b32 v13, 15, v0")
    k(f"v_add_u32 v13, s{sT0}, v13")
    k("v_mul_u32_u24 v13, 1152, v13")
    k("v_lshrrev_b32 v14, 4, v0")
    k("v_lshl_add_u32 v13, v14, 3, v13")
    k(f"s_lshl_b32 s{sT0}, s{sNt}, 7")
    k(f"s_lshl_b32 s{sT1}, s{sW}, 5")
    k(f"s_add_u32 s{sT0}, s{sT0}, s{sT1}")
    k(f"v_add_u32 v{vX}, s{sT0}, v13")
    XR = TMP + 4
    for mt in range(5):
        k(f"s_mov_b32 s{sH+mt}, {mt*16*1152}")
        k(f"buffer_load_dwordx2 v[{XR+2*mt}:{XR+2*mt+1}], v{vX}, s[44:47], s{sH+mt} offen")
    k("s_waitcnt lgkmcnt(0)")
    k("s_barrier")
    k(f"s_lshl_b32 s{sT0}, s{sW}, 10")
    k(f"v_add_u32 v{TMP+1}, s{sT0}, v{TMP}")
    k(f"v_add_u32 v{TMP+3}, {40*1024}, v{TMP+1}")
    for src in range(4):
        for mt in range(5):
            a = ACCY + 4 * (src * 5 + mt)
            b = TMP + 1 if src < 2 else TMP + 3
            k(f"ds_read_b128 v[{a}:{a+3}], v{b} offset:{(src%2)*20*1024 + mt*4096}")
    k(f"v_add_u32 v{TMP+2}, {80*1024}, v{TMP+1}")
    for mt in range(5):
        a = ACCS + 4 * mt
        k(f"ds_read_b128 v[{a}:{a+3}], v{TMP+2} offset:{mt*4096}")
    k("s_waitcnt lgkmcnt(0)")
    for mt in range(5):
        for r in range(4):
            a = ACCY + 4 * mt + r
            k(f"v_add_f32 v{a}, v{a}, v{a+20}")
            k(f"v_add_f32 v{a+40}, v{a+40}, v{a+60}")
            k(f"v_add_f32 v{a}, v{a}, v{a+40}")
    k("s_waitcnt vmcnt(0)")
    L2E = f2u(-1.4426950408889634)
    for mt in range(5):
        for pr in range(2):
            y0 = ACCY + 4 * mt + 2 * pr
            s0 = ACCS + 4 * mt + 2 * pr
            t = 176 + 8 * pr
            k(f"v_cvt_pk_bf16_f32 v{t}, v{y0}, v{y0+1}")
            k(f"v_cvt_pk_bf16_f32 v{t+1}, v{s0}, v{s0+1}")
            k(f"v_lshlrev_b32 v{t+2}, 16, v{t}")
            k(f"v_and_b32 v{t+3}, 0xffff0000, v{t}")
            k(f"v_mul_f32 v{t+4}, {hx(L2E)}, v{t+2}")
            k(f"v_mul_f32 v{t+5}, {hx(L2E)}, v{t+3}")
            k(f"v_exp_f32 v{t+4}, v{t+4}")
            k(f"v_exp_f32 v{t+5}, v{t+5}")
            k(f"v_lshlrev_b32 v{t+6}, 16, v{t+1}")
            k(f"v_add_f32 v{t+4}, 1.0, v{t+4}")
            k(f"v_add_f32 v{t+5}, 1.0, v{t+5}")
            k(f"v_rcp_f32 v{t+4}, v{t+4}")
            k(f"v_rcp_f32 v{t+5}, v{t+5}")
            k(f"v_and_b32 v{t+7}, 0xffff0000, v{t+1}")
            k(f"v_mul_f32 v{t+4}, v{t+4}, v{t+2}")
            k(f"v_mul_f32 v{t+5}, v{t+5}, v{t+3}")
            k(f"v_cvt_pk_bf16_f32 v{t}, v{t+4}, v{t+5}")
            k(f"v_lshlrev_b32 v{t+4}, 16, v{t}")
            k(f"v_and_b32 v{t+5}, 0xffff0000, v{t}")
            k(f"v_mul_f32 v{t+4}, v{t+4}, v{t+6}")
            k(f"v_mul_f32 v{t+5}, v{t+5}, v{t+7}")
            k(f"v_cvt_pk_bf16_f32 v{t}, v{t+4}, v{t+5}")
            k(f"v_lshlrev_b32 v{t+4}, 16, v{t}")
            k(f"v_and_b32 v{t+5}, 0xffff0000, v{t}")
            xr = XR + 2 * mt + pr
            k(f"v_lshlrev_b32 v{t+6}, 16, v{xr}")
            k(f"v_and_b32 v{t+7}, 0xffff0000, v{xr}")
            k(f"v_add_f32 v{t+4}, v{t+4}, v{t+6}")
            k(f"v_add_f32 v{t+5}, v{t+5}, v{t+7}")
            k(f"v_cvt_pk_bf16_f32 v{xr}, v{t+4}, v{t+5}")
        k(f"buffer_store_dwordx2 v[{XR+2*mt}:{XR+2*mt+1}], v{vX}, s[48:51], s{sH+mt} offen")
    stamp(k, 252)
    stamp_rt(k, 252)
    k("s_endpgm")
    k.label("L_k3_attn_only")
    gen_k2(k)
    srd(k, 72, 70, 71, FLAG_SIZE, FLAG_OFF)
    k("v_lshrrev_b32 v1, 6, v255")
    k("s_lshl_b32 s3, s2, 2")
    k("v_add_u32 v249, s3, v1")
    k("v_lshlrev_b32 v249, 2, v249")
    k("v_mov_b32 v254, 1")
    k("s_waitcnt vmcnt(0)")
    k("s_mov_b64 exec, 1")
    k("buffer_store_dword v254, v249, s[72:75], 0 offen sc1")
    k.label("L_k3_done")
    k("s_endpgm")
    return k.text()


def main():
    ref = open(f"cdna_kernels/{NAME}.s.ref").read().splitlines()
    head = []
    for line in ref:
        if line.startswith("; @launch") or line.startswith("; Override") or line.startswith("; grid="):
            continue
        if not line.startswith(";"):
            break
        head.append(line)
    out = "\n".join(head) + "\n"
    out += "; @launch kernel=k0_ln_kernel grid=(256,1,1) block=(256,1,1) lds=0\n"
    out += f"; @launch kernel=k1_gemm1_kernel grid=(256,1,1) block=(256,1,1) lds={K1_LDS_ALLOC}\n"
    out += f"; @launch kernel=k3_gemm2_kernel grid=(256,1,1) block=(256,1,1) lds={K3_LDS}\n"
    out += '.amdgcn_target "amdgcn-amd-amdhsa--gfx950"\n.text\n'
    out += kernel_header("k0_ln_kernel") + gen_k0()
    out += kernel_header("k1_gemm1_kernel") + gen_k1()
    out += kernel_header("k3_gemm2_kernel") + gen_k3()
    out += '.section .rodata,"a"\n.p2align 6\n'
    out += kernel_desc("k0_ln_kernel", 148, 148)
    out += ".p2align 6\n" + kernel_desc("k1_gemm1_kernel", 512, 256)
    out += ".p2align 6\n" + kernel_desc("k3_gemm2_kernel", 512, 256)
    path = sys.argv[1] if len(sys.argv) > 1 and not sys.argv[1].startswith("--") else f"cdna_kernels/{NAME}.s"
    open(path, "w").write(out)
    print("wrote", path, len(out), "bytes")


if __name__ == "__main__":
    main()
```
